```python
import torch

def _softmax(x, axis=-1):
    return torch.softmax(x, dim=axis)
def _gelu(x):
    return torch.nn.functional.gelu(x, approximate="tanh")
def _silu(x):
    return torch.nn.functional.silu(x)
def _sigmoid(x):
    return torch.sigmoid(x)
def _layernorm(x, axis=-1, eps=1e-5):
    m = x.mean(dim=axis, keepdim=True)
    v = x.var(dim=axis, keepdim=True, unbiased=False)
    return (x - m) / torch.sqrt(v + eps)
def _scatter_add(tgt, idx, src, axis=0):
    return tgt.clone().index_add_(axis, idx, src)
def _segment_sum(src, seg, n):
    out = torch.zeros((n,) + src.shape[1:], dtype=src.dtype)
    return out.index_add_(0, seg, src)
def _pad(x, pw):
    flat = tuple(v for pair in reversed(pw) for v in pair)
    return torch.nn.functional.pad(x, flat)

kernel_name = 'parallel_sum__ssm_conv_s4d__moe_arch_mod__prompt'

def setup_inputs():

    _w = (lambda a: (lambda t: t.to(torch.bfloat16) if t.is_floating_point() else t)(torch.as_tensor(a)))
    def _A_setup():
        Bsz, L, D, N = 1, 2048, 448, 256
        return {
            "u": _w((lambda *s: torch.randn(*s, dtype=torch.bfloat16) * 0.05)(Bsz, L, D)),
            "log_A_real": _w((lambda *s: torch.randn(*s, dtype=torch.bfloat16) * 3.2)(D, N) * 0.5),
            "A_imag": _w((lambda *s: torch.randn(*s, dtype=torch.bfloat16) * 0.1)(D, N) * 3.14),
            "C_real": _w((lambda *s: torch.randn(*s, dtype=torch.bfloat16) * 1.6)(D, N) / N ** 0.5),
            "C_imag": _w((lambda *s: torch.randn(*s, dtype=torch.bfloat16) * 1.6)(D, N) / N ** 0.5),
            "log_dt": _w((lambda *s: torch.randn(*s, dtype=torch.bfloat16) * 0.1)(D) * 0.5 - 4.0),
            "D_skip": _w((lambda *s: torch.randn(*s, dtype=torch.bfloat16) * 0.1)(D)),
        }
    _A_in = _A_setup()

    def _B_setup():
        B, S, D, F, C = 1, 2048, 448, 1792, 1
        return {
            "x": _w((lambda *s: torch.randn(*s, dtype=torch.bfloat16) * 0.05)(B, S, D)),
            "w_r": _w((lambda *s: torch.randn(*s, dtype=torch.bfloat16) * 0.05)(D)),
            "w_gate": _w((lambda *s: torch.randn(*s, dtype=torch.bfloat16) * 0.05)(D, F)),
            "w_up": _w((lambda *s: torch.randn(*s, dtype=torch.bfloat16) * 0.05)(D, F)),
            "w_down": _w((lambda *s: torch.randn(*s, dtype=torch.bfloat16) * 0.05)(F, D)),
        }
    _B_in = _B_setup()

    return {
        "A_u": _A_in["u"],
        "A_log_A_real": _A_in["log_A_real"],
        "A_A_imag": _A_in["A_imag"],
        "A_C_real": _A_in["C_real"],
        "A_C_imag": _A_in["C_imag"],
        "A_log_dt": _A_in["log_dt"],
        "A_D_skip": _A_in["D_skip"],
        "B_x": _B_in["x"],
        "B_w_r": _B_in["w_r"],
        "B_w_gate": _B_in["w_gate"],
        "B_w_up": _B_in["w_up"],
        "B_w_down": _B_in["w_down"],
    }

def reference(A_u, A_log_A_real, A_A_imag, A_C_real, A_C_imag, A_log_dt, A_D_skip, B_x, B_w_r, B_w_gate, B_w_up, B_w_down):
    def _A_ref(u, log_A_real, A_imag, C_real, C_imag, log_dt, D_skip):
        L = u.shape[1]
        dt = torch.exp(log_dt)
        A = -torch.exp(log_A_real) + 1j * A_imag
        C = (C_real + 1j * C_imag) * dt[:, None]
        pos = (lambda x, dt: x.to(dt))(torch.arange(L), log_dt.dtype)
        P = torch.exp((A * dt[:, None])[:, :, None] * pos[None, None, :])
        K = 2.0 * torch.einsum("dn,dnl->dl", C, P).real
        L2 = 2 * L
        u_t = (lambda x, *d: x.permute(*d))(u, 0, 2, 1)
        Kf = (lambda x, *a, **k: torch.fft.rfft(x.float(), *a, **k))(K, L2)
        Uf = (lambda x, *a, **k: torch.fft.rfft(x.float(), *a, **k))(u_t, L2)
        y = (lambda x, *a, **k: torch.fft.irfft(x, *a, **k).to(torch.bfloat16))(Uf * Kf[None, :, :], L2)[:, :, :L]
        y = (lambda x, *d: x.permute(*d))(y, 0, 2, 1)
        return y + u * D_skip[None, None, :]

    def _B_ref(x, w_r, w_gate, w_up, w_down):
        B, S, D = x.shape
        C = 1
        r = x @ w_r
        idx = torch.argsort(-r, axis=-1)[:, :C]
        idx_e = (lambda x, n, axis: torch.repeat_interleave(x, n, dim=axis))(idx.reshape(B, C, 1), D, axis=2)
        x_sel = (lambda x, i, axis: torch.take_along_dim(x, i, dim=axis))(x, idx_e, axis=1)
        g = _silu(x_sel @ w_gate)
        u = x_sel @ w_up
        y = (g * u) @ w_down
        r_sel = _sigmoid((lambda x, i, axis: torch.take_along_dim(x, i, dim=axis))(r, idx, axis=1))
        y = y * r_sel.reshape(B, C, 1)
        b_off = (torch.arange(B) * S).reshape(B, 1)
        flat_idx = (idx + b_off).reshape(B * C)
        zero = (x * 0.0).reshape(B * S, D)
        upd = _scatter_add(zero, flat_idx, y.reshape(B * C, D), axis=0)
        return x + upd.reshape(B, S, D)

    x = A_u
    xn = _layernorm(x, axis=-1)
    return x + _A_ref(xn, A_log_A_real, A_A_imag, A_C_real, A_C_imag, A_log_dt, A_D_skip) + _B_ref(xn, B_w_r, B_w_gate, B_w_up, B_w_down)
```

```python
import re

TRANS = ("v_exp_f32","v_log_f32","v_rcp_f32","v_rsq_f32","v_sqrt_f32","v_sin_f32","v_cos_f32","v_rcp_iflag_f32")

def regs_of(tok):
    tok = tok.strip()
    tok = tok.lstrip("-")
    if tok.startswith("abs("): tok = tok[4:-1]
    if tok.startswith("|"): tok = tok.strip("|")
    m = re.fullmatch(r"([vsa])(\d+)", tok)
    if m: return {(m.group(1), int(m.group(2)))}
    m = re.fullmatch(r"([vsa])\[(\d+):(\d+)\]", tok)
    if m: return {(m.group(1), i) for i in range(int(m.group(2)), int(m.group(3))+1)}
    if tok in ("vcc","vcc_lo","vcc_hi"): return {("vcc",0)}
    if tok in ("exec","exec_lo","exec_hi"): return {("exec",0)}
    if tok == "m0": return {("m0",0)}
    return set()

class Ins:
    def __init__(self, text):
        self.text = text
        t = text.split(";")[0].strip()
        self.label = None
        self.op = None
        self.dst = set(); self.src = set()
        self.srcc = set(); self.srcab = set()
        if t.endswith(":"):
            self.label = t[:-1]; return
        if t.startswith(".") or not t:
            return
        parts = t.split(None, 1)
        self.op = parts[0]
        rest = parts[1] if len(parts) > 1 else ""
        ops = []; depth = 0; cur = ""
        for ch in rest:
            if ch in "[(": depth += 1
            if ch in "])": depth -= 1
            if ch == "," and depth == 0:
                ops.append(cur.strip()); cur = ""
            else: cur += ch
        if cur.strip(): ops.append(cur.strip())
        mods = ""
        if ops:
            last = ops[-1].split(None, 1)
            ops[-1] = last[0]
            mods = last[1] if len(last) > 1 else ""
        self.ops = ops; self.mods = mods
        op = self.op
        self.is_mfma = op.startswith("v_mfma")
        self.is_valu = op.startswith("v_") and not self.is_mfma
        self.is_salu = op.startswith("s_")
        self.is_vmem = op.startswith(("buffer_","global_"))
        self.is_ds = op.startswith("ds_")
        self.is_trans = op.replace("_e32","").replace("_e64","") in TRANS
        self.is_dpp = "_dpp" in op
        self.is_dot = op.startswith("v_dot")
        self.is_perml = op.startswith("v_permlane")
        self.is_rdlane = op.startswith(("v_readlane","v_readfirstlane"))
        R = [regs_of(o) for o in ops]
        if self.is_mfma:
            self.dst = R[0]; self.srcab = R[1] | R[2]; self.srcc = R[3]; self.src = self.srcab | self.srcc
            self.passes = 8 if "32x32" in op else 4
        elif self.is_valu:
            self.dst = set(R[0]); self.src = set().union(*R[1:]) if len(R) > 1 else set()
            if op.startswith(("v_add_co","v_sub_co","v_addc_co","v_subb_co")):
                self.dst |= R[1]; self.src = set().union(*R[2:])
            if op.startswith(("v_fmac","v_dot2c","v_writelane")) or self.is_dpp: self.src |= R[0]
            if self.is_perml:
                self.dst = R[0] | R[1]; self.src = R[0] | R[1]
            if op.startswith("v_cmpx"): self.dst |= {("exec",0)}
        elif self.is_vmem:
            if "_load" in op:
                if " lds" in " "+mods: self.src = set().union(*R)
                else:
                    self.dst = R[0]; self.src = set().union(*R[1:])
                    if "d16" in op: self.src |= R[0]
            else:
                self.src = set().union(*R) if R else set()
                self.data = (R[0] if op.startswith("buffer_") else R[1]) if R else set()
        elif self.is_ds:
            if "read" in op or "bpermute" in op or "swizzle" in op:
                self.dst = R[0]; self.src = set().union(*R[1:]) if len(R) > 1 else set()
            else:
                self.src = set().union(*R)
            if "addtid" in op: self.src |= {("m0",0)}
        elif self.is_salu:
            if op.startswith(("s_cmp","s_cbranch","s_branch","s_waitcnt","s_nop","s_barrier","s_sleep","s_endpgm","s_setprio","s_bitcmp")):
                self.src = set().union(*R) if R else set()
            else:
                self.dst = set(R[0]); self.src = set().union(*R[1:]) if len(R) > 1 else set()
                if "saveexec" in op: self.dst |= {("exec",0)}
    def states(self):
        if self.op is None: return 0
        if self.op == "s_nop": return int(self.ops[0], 0) + 1
        return 1

def need(p, c):
    n = 0
    vd = {r for r in p.dst if r[0] in "va" and r[0] != "vcc"}
    sd = {r for r in p.dst if r[0] in ("s","vcc")}
    if p.is_valu:
        if c.is_mfma and (vd & c.src): n = max(n, 2)
        if p.is_trans and not c.is_trans and (vd & c.src): n = max(n, 1)
        if c.is_valu and c.is_dpp and (vd & c.src): n = max(n, 2)
        if c.is_valu and c.is_perml and (vd & c.src): n = max(n, 2)
        if c.is_valu and c.is_rdlane and (vd & c.src): n = max(n, 1)
        if c.is_valu and (sd & c.src):
            n = max(n, 4 if c.op.startswith(("v_readlane","v_writelane")) else 2)
        if c.is_vmem and (sd & c.src): n = max(n, 5)
        if p.is_dot and (vd & (c.src | c.dst)) and (c.is_valu or c.is_mfma or c.is_vmem or c.is_ds):
            same = c.op == p.op
            if same:
                ab = set().union(*[regs_of(o) for o in c.ops[1:3]])
                if vd & ab: n = max(n, 3)
            else: n = max(n, 3)
        if ("exec",0) in p.dst and (c.is_dpp if c.is_valu else False): n = max(n, 5)
        if ("exec",0) in p.dst and (c.is_mfma or (c.is_valu and (c.is_rdlane or c.is_perml))): n = max(n, 4)
        if "sdwa" in p.op and "dst_sel:DWORD" not in p.mods and c.is_valu and (vd & c.src): n = max(n, 1)
    if p.is_mfma:
        k = p.passes
        if c.is_mfma:
            if p.dst & c.srcab: n = max(n, k + 4)
            if p.dst & c.srcc and not (c.srcc == p.dst and c.passes == k): n = max(n, k + 2)
            if (p.dst & c.dst) and not (c.srcc == p.dst and c.passes == k): n = max(n, k + 2)
        elif c.is_valu:
            if p.dst & (c.src | c.dst): n = max(n, k + 4)
            if p.srcc & c.dst: n = max(n, k - 1)
        elif c.is_vmem or c.is_ds:
            if p.dst & (c.src | c.dst): n = max(n, k + 4)
    if p.is_vmem and "_store" in p.op and ("x4" in p.op or "x3" in p.op):
        if getattr(p, "data", set()) & c.dst: n = max(n, 2 if c.is_valu else 1)
    if p.is_salu and ("m0",0) in p.dst:
        if (c.is_ds and "addtid" in c.op) or (c.is_vmem and " lds" in " "+c.mods): n = max(n, 1)
    return n

class Asm:
    def __init__(self):
        self.lines = []
    def __call__(self, text):
        for l in text.strip("\n").split("\n"):
            if l.strip(): self.lines.append(l.strip())
    def pad(self, verbose=False):
        total = 0
        while True:
            ins = [Ins(l) for l in self.lines]
            labels = {x.label: i for i, x in enumerate(ins) if x.label}
            preds = [[] for _ in ins]
            for i, x in enumerate(ins):
                fall = True
                if x.op in ("s_branch",): fall = False
                if x.op == "s_endpgm": fall = False
                if x.op and x.op.startswith(("s_branch","s_cbranch")):
                    preds[labels[x.ops[0]]].append(i)
                if fall and i + 1 < len(ins): preds[i+1].append(i)
            fix = None
            for i, c in enumerate(ins):
                if c.op is None or c.op in ("s_nop",): continue
                worst = 0
                stack = [(p, 0) for p in preds[i]]
                seen = {}
                while stack:
                    j, d = stack.pop()
                    if d >= 20: continue
                    if seen.get(j, 99) <= d: continue
                    seen[j] = d
                    p = ins[j]
                    if p.op is not None:
                        k = need(p, c)
                        if k - d > worst:
                            worst = k - d; why = p.text
                    nd = d + p.states()
                    for q in preds[j]: stack.append((q, nd))
                if worst > 0:
                    fix = (i, worst, why); break
            if fix is None: break
            i, w, why = fix
            if verbose: print(f"pad {w} before [{self.lines[i]}] due to [{why}]")
            self.lines.insert(i, f"s_nop {w-1}")
            total += w
        return total
    def text(self):
        out = []
        for l in self.lines:
            out.append(l if (l.endswith(":") or l.startswith(".")) else "    " + l)
        return "\n".join(out) + "\n"
```

```python
import sys, os
sys.path.insert(0, os.path.dirname(__file__))
from asmlib import Asm
NAME = "parallel_sum__ssm_conv_s4d__moe_arch_mod__prompt"
KN = NAME + "_kernel"

WS_STAT = 0x1000
WS_KEY  = 0x5000
WS_FFN  = 0x8000
WS_XIN  = 0x40000
WS_DBG  = 0x800000
WS_SIZE = 0x1000000
RS   = 8704
XREV = 8*RS
XCH  = 4576
MISC = XREV + 2*XCH
LDS_BYTES = MISC + 64
KOFF = 3072
LOG2E = 0x3fb8aa3b
SPIN_MAX = 200000

def gen(stamps=False, dump=None):
    a = Asm()
    nst = [0]
    def stamp(k):
        if stamps: a(f"s_memrealtime s[{64+2*k}:{65+2*k}]")
    def stamp_flush(n):
        if not stamps: return
        a("s_waitcnt lgkmcnt(0)")
        a("s_lshl_b32 s62, s2, 3\ns_add_u32 s62, s62, s40\ns_lshl_b32 s62, s62, 6")
        a(f"s_add_u32 s62, s62, {WS_DBG}")
        a("s_mov_b64 exec, 1")
        a("v_mov_b32 v1, 0")
        for k in range(n):
            a(f"v_mov_b32 v2, s{64+2*k}\nbuffer_store_dword v2, v1, s[8:11], s62 offen offset:{4*k}")
    def srd(base, size):
        a(f"s_mov_b32 s{base+2}, {size}\ns_mov_b32 s{base+3}, 0x20000")
    def cmul(d, x, y, t=None):
        t = d if t is None else t
        a(f"v_pk_mul_f32 v[{t}:{t+1}], v[{x}:{x+1}], v[{y}:{y+1}] op_sel_hi:[0,1]")
        a(f"v_pk_fma_f32 v[{d}:{d+1}], v[{x}:{x+1}], v[{y}:{y+1}], v[{t}:{t+1}] op_sel:[1,1,0] op_sel_hi:[1,0,1] neg_lo:[0,1,0]")
    def next_tag():
        a("s_mul_i32 s42, s42, 0x9e3779b1\ns_add_u32 s42, s42, 0x7f4a7c15")

    a(f"{KN}:")
    stamp(0)
    a(f"""
    s_cmp_ge_u32 s2, 252
    s_cbranch_scc1 L_exit
    s_load_dwordx2 s[4:5], s[0:1], 0
    s_load_dwordx2 s[8:9], s[0:1], 112
    v_lshrrev_b32 v2, 6, v0
    v_and_b32 v1, 63, v0
    s_and_b32 s43, s2, 7
    v_readfirstlane_b32 s40, v2
    s_lshr_b32 s44, s2, 3
    """)
    srd(4, 1835008); srd(8, WS_SIZE)
    a("""
    s_cmp_ge_u32 s44, 28
    s_cbranch_scc1 L_ffn
    """)
    a("""
    s_load_dwordx2 s[32:33], s[0:1], 64
    s_load_dwordx2 s[16:17], s[0:1], 8
    s_load_dwordx2 s[20:21], s[0:1], 16
    s_load_dwordx2 s[24:25], s[0:1], 24
    s_load_dwordx2 s[28:29], s[0:1], 32
    s_load_dwordx4 s[36:39], s[0:1], 40
    s_load_dwordx2 s[12:13], s[0:1], 96
    s_mul_i32 s41, s43, 28
    s_add_u32 s41, s41, s44
    """)
    srd(32, 896); srd(16, 229376); srd(20, 229376); srd(24, 229376); srd(28, 229376); srd(12, 1835008)
    a("""
    s_mul_i32 s45, s40, 224
    s_add_u32 s45, s45, s41
    s_mul_i32 s46, s45, 1792
    s_lshl_b32 s47, s41, 10
    s_lshl_b32 s48, s41, 2
    """)
    a("""
    v_and_b32 v3, 31, v1
    v_lshrrev_b32 v5, 5, v1
    v_cmp_gt_u32 vcc, 28, v3
    v_lshlrev_b32 v3, 5, v3
    v_mul_u32_u24 v4, 896, v5
    v_add_u32 v4, v4, v3
    v_mov_b32 v6, 0x7fffffff
    v_cndmask_b32 v4, v6, v4, vcc
    v_lshlrev_b32 v6, 1, v0
    v_mov_b32 v16, 0
    v_mov_b32 v17, 0
    v_mov_b32 v18, 0
    v_mov_b32 v19, 0
    """)
    a("""
    v_and_b32 v7, 3, v1
    v_bfe_u32 v8, v1, 4, 1
    v_lshl_add_u32 v7, v8, 2, v7
    v_bfe_u32 v8, v1, 2, 2
    v_lshl_add_u32 v8, v5, 2, v8
    v_and_b32 v9, 3, v2
    v_lshl_add_u32 v8, v9, 3, v8
    v_mul_u32_u24 v9, 3584, v7
    v_lshl_add_u32 v9, v8, 2, v9
    v_mul_u32_u24 v10, 12288, v8
    v_lshl_add_u32 v10, v7, 4, v10
    s_and_b32 s49, s41, 31
    s_lshr_b32 s50, s41, 5
    s_mul_i32 s51, s49, 57344
    s_lshl_b32 s52, s50, 7
    s_add_u32 s51, s51, s52
    s_add_u32 s52, s51, 28672
    s_mul_i32 s53, s50, 393216
    s_mul_i32 s49, s49, 384
    s_add_u32 s53, s53, s49
    """)
    a(f"s_add_u32 s53, s53, {WS_XIN}")
    a("s_waitcnt lgkmcnt(0)")
    stamp(1)
    a("""
    s_load_dword s42, s[8:9], 0
    s_load_dword s54, s[36:37], s48
    s_load_dword s55, s[38:39], s48
    s_cmp_ge_u32 s45, 1024
    s_cbranch_scc1 L_c_nost0
    buffer_load_dwordx4 v[32:35], v4, s[4:7], s46 offen
    buffer_load_dwordx4 v[36:39], v4, s[4:7], s46 offen offset:16
    buffer_load_dwordx4 v[40:43], v3, s[32:35], 0 offen
    buffer_load_dwordx4 v[44:47], v3, s[32:35], 0 offen offset:16
    L_c_nost0:
    buffer_load_short_d16_hi v16, v6, s[16:19], s47 offen
    buffer_load_short_d16_hi v17, v6, s[20:23], s47 offen
    buffer_load_short_d16_hi v18, v6, s[24:27], s47 offen
    buffer_load_short_d16_hi v19, v6, s[28:31], s47 offen
    s_cmp_lt_u32 s40, 4
    s_cbranch_scc1 L_c_notile0
    """)
    for k, r in enumerate([64, 65, 66, 72]):
        a(f"buffer_load_dword v{r}, v9, s[4:7], s51 offen offset:{k*896}")
    for k, r in enumerate([68, 69, 70, 73]):
        a(f"buffer_load_dword v{r}, v9, s[4:7], s52 offen offset:{k*896}")
    a("L_c_notile0:")
    O = {0:0, 8:4, 1:9*128, 4:10*128, 2:14*128, 6:16*128, 3:18*128, 5:19*128, 7:20*128}
    GA = 20
    a(f"""
    v_and_b32 v11, 255, v0
    v_lshrrev_b32 v12, 8, v0
    v_mul_u32_u24 v12, {4*RS}, v12
    v_lshl_add_u32 v{GA+1}, v11, 2, v12
    v_lshl_add_u32 v29, v11, 4, v12
    v_cmp_gt_u32 s[56:57], 32, v11
    v_cmp_gt_u32 s[58:59], 64, v11
    v_cmp_gt_u32 s[60:61], 33, v11
    v_cmp_gt_u32 vcc, 0x80, v11
    v_add_u32 v13, 4, v{GA+1}
    v_add_u32 v14, {O[4]}, v{GA+1}
    v_and_b32 v15, 1, v11
    v_lshl_add_u32 v15, v15, 2, v{GA+1}
    v_cndmask_b32 v{GA+5}, v15, v14, vcc
    v_cndmask_b32 v15, v{GA+1}, v14, vcc
    v_cndmask_b32 v14, v13, v14, vcc
    v_add_u32 v12, {O[1]}, v{GA+1}
    v_cndmask_b32 v{GA+2}, v{GA+1}, v12, s[56:57]
    v_add_u32 v12, {O[2]}, v{GA+1}
    v_cndmask_b32 v{GA+3}, v{GA+1}, v12, s[58:59]
    v_add_u32 v12, {O[3]}, v{GA+1}
    v_cndmask_b32 v{GA+4}, v15, v12, s[56:57]
    v_add_u32 v12, {O[5]}, v{GA+1}
    v_cndmask_b32 v{GA+6}, v14, v12, s[56:57]
    v_add_u32 v12, {O[6]}, v{GA+1}
    v_cndmask_b32 v{GA+7}, v13, v12, s[58:59]
    v_add_u32 v12, {O[7]}, v{GA+1}
    v_cndmask_b32 v{GA+8}, v13, v12, s[56:57]
    v_add_u32 v12, {O[7]-4}, v{GA+1}
    v_cndmask_b32 v{GA}, v{GA+1}, v12, s[60:61]
    v_cmp_eq_u32 s[56:57], 0, v11
    v_cmp_gt_u32 s[58:59], 2, v11
    """)
    a(f"""
    v_mov_b32 v48, 0
    v_mov_b32 v49, 0
    v_mov_b32 v50, 0
    v_mov_b32 v51, 0
    v_mul_u32_u24 v12, {XCH}, v2
    v_lshl_add_u32 v12, v1, 4, v12
    v_add_u32 v12, {XREV+4096}, v12
    v_cmp_gt_u32 vcc, 30, v1
    s_cmp_ge_u32 s40, 2
    s_cbranch_scc1 L_c_nopad
    s_and_saveexec_b64 s[60:61], vcc
    ds_write_b128 v12, v[48:51]
    s_mov_b64 exec, s[60:61]
    L_c_nopad:
    s_mul_i32 s49, s40, {RS}
    s_mov_b32 m0, s49
    v_and_b32 v30, 31, v1
    v_mul_u32_u24 v30, 272, v30
    v_lshl_add_u32 v30, v5, 4, v30
    v_add_u32 v30, s49, v30
    """)
    a("s_waitcnt lgkmcnt(0)")
    next_tag()
    a("s_barrier")
    stamp(2)
    a("""
    s_cmp_ge_u32 s45, 1024
    s_cbranch_scc1 L_c_nost1
    s_cmp_lt_u32 s40, 4
    s_cbranch_scc1 L_c_w4
    s_waitcnt vmcnt(12)
    s_branch L_c_w4j
    L_c_w4:
    s_waitcnt vmcnt(4)
    L_c_w4j:
    s_mov_b32 s49, 0x3f803f80
    """)
    stamp(3)
    for i in range(8):
        a(f"""
        v_dot2c_f32_bf16 v48, s49, v{32+i}
        v_dot2c_f32_bf16 v49, v{32+i}, v{32+i}
        v_dot2c_f32_bf16 v50, v{32+i}, v{40+i}
        v_dot2c_f32_bf16 v51, s49, v{40+i}
        """)
    for sh in (1, 2, 4, 8):
        for r in (48, 49, 50, 51):
            a(f"v_add_f32_dpp v{r}, v{r}, v{r} row_shr:{sh} row_mask:0xf bank_mask:0xf bound_ctrl:0")
    for r in (48, 49, 50, 51):
        a(f"v_add_f32_dpp v{r}, v{r}, v{r} row_bcast:15 row_mask:0xa bank_mask:0xf")
    a(f"""
    v_mul_f32 v48, 0x3b124925, v48
    v_mul_f32 v49, 0x3b124925, v49
    v_fma_f32 v49, -v48, v48, v49
    v_max_f32 v49, 0, v49
    v_cvt_pk_bf16_f32 v52, v49, v48
    v_lshlrev_b32 v49, 16, v52
    v_add_f32 v49, 0x3727c5ac, v49
    v_cvt_pk_bf16_f32 v49, v49, v49
    v_lshlrev_b32 v49, 16, v49
    v_sqrt_f32 v49, v49
    v_and_b32 v54, 0xffff0000, v52
    v_cvt_pk_bf16_f32 v49, v49, v49
    v_lshlrev_b32 v49, 16, v49
    v_rcp_f32 v53, v49
    v_fma_f32 v50, -v54, v51, v50
    v_mov_b32 v55, s42
    v_mul_f32 v50, v50, v53
    v_mov_b32_dpp v52, v53 row_bcast:31 row_mask:0xc bank_mask:0xf
    v_mov_b32_dpp v48, v54 row_bcast:31 row_mask:0xc bank_mask:0xf
    v_cvt_pk_bf16_f32 v50, v50, v50
    v_lshrrev_b32 v48, 16, v48
    v_ashrrev_i32 v51, 31, v50
    v_or_b32 v54, v54, v48
    v_or_b32 v51, 0x80000000, v51
    s_lshl_b32 s49, s45, 1
    s_sub_u32 s49, 2047, s49
    v_xor_b32 v50, v50, v51
    v_sub_u32 v51, s49, v5
    s_mov_b32 s49, 0xffff0000
    v_and_or_b32 v56, v50, s49, v51
    v_mov_b32 v57, s42
    s_and_b32 s49, s45, 1
    s_lshl_b32 s49, s49, 13
    v_max_u32_dpp v56, v56, v56 row_bcast:31 row_mask:0xc bank_mask:0xf
    s_lshr_b32 s50, s45, 1
    s_lshl_b32 s50, s50, 4
    s_add_u32 s49, s49, s50
    s_add_u32 s49, s49, {WS_STAT}
    s_lshl_b32 s50, s45, 3
    s_add_u32 s50, s50, {WS_KEY}
    s_mov_b32 exec_lo, 0
    s_brev_b32 exec_hi, 1
    buffer_store_dwordx4 v[52:55], off, s[8:11], s49 sc1
    buffer_store_dwordx2 v[56:57], off, s[8:11], s50 sc1
    s_mov_b64 exec, -1
    s_waitcnt vmcnt(2)
    s_branch L_c_st1j
    L_c_nost1:
    s_waitcnt vmcnt(0)
    L_c_st1j:
    s_cmp_lt_u32 s40, 4
    s_cbranch_scc1 L_c_notile1
    v_mov_b32 v67, s42
    v_mov_b32 v71, s42
    v_mov_b32 v75, s42
    buffer_store_dwordx4 v[64:67], v10, s[8:11], s53 offen sc1
    buffer_store_dwordx4 v[68:71], v10, s[8:11], s53 offen offset:128 sc1
    buffer_store_dwordx4 v[72:75], v10, s[8:11], s53 offen offset:256 sc1
    s_branch L_c_tile1j
    L_c_notile1:
    s_lshl_b32 s54, s54, 16
    L_c_tile1j:
    """)
    stamp(4)
    a(f"""
    s_and_b32 s54, s54, 0xffff0000
    v_mov_b32 v3, {LOG2E}
    v_mul_f32 v4, s54, v3
    v_mul_f32 v16, v16, v3
    v_exp_f32 v4, v4
    v_exp_f32 v16, v16
    v_cvt_pk_bf16_f32 v4, v4, v16
    v_and_b32 v16, 0xffff0000, v4
    v_lshlrev_b32 v4, 16, v4
    v_mul_f32 v16, v16, v4
    v_mul_f32 v17, v17, v4
    v_add_f32 v4, v4, v4
    v_mul_f32 v16, 0xbfb8aa3b, v16
    v_mul_f32 v17, 0.15915494, v17
    v_mul_f32 v18, v18, v4
    v_mul_f32 v19, -v19, v4
    """)
    Z1, W8, ZZ = 32, 34, 36
    def cis(d, k):
        if k == 1:
            a(f"v_fract_f32 v7, v17\nv_exp_f32 v6, v16")
        else:
            a(f"v_mul_f32 v7, {k}, v17\nv_mul_f32 v6, {k}, v16\nv_fract_f32 v7, v7\nv_exp_f32 v6, v6")
        a(f"v_cos_f32 v{d}, v7\nv_sin_f32 v{d+1}, v7")
        a(f"v_pk_mul_f32 v[{d}:{d+1}], v[{d}:{d+1}], v[6:7] op_sel_hi:[1,0]")
    cis(Z1, 1); cis(ZZ, "0x43800000"); cis(W8, "0x41000000")
    slot_of = {0:0, 256:1, 512:2, 768:3, 1024:4, 1280:5, 1536:6, 1792:7, 2048:8, 1:9, 4:10, 260:11, 516:12, 772:13,
               2:14, 258:15, 6:16, 262:17, 3:18, 5:19, 7:20}
    tcount = [0]
    def putA(h, r):
        s = slot_of[h]; m, e = s >> 1, s & 1
        row = 8*(m >> 2) + 4*e + (m & 3)
        t = 8 + (tcount[0] & 3); tcount[0] += 1
        if r is None: a(f"v_mov_b32 v{t}, 0x3f80")
        else: a(f"v_cvt_pk_bf16_f32 v{t}, v{r}, v{r+1}")
        a(f"ds_write_addtid_b32 v{t} offset:{row*272}")
    z = {1: Z1, 256: ZZ}
    putA(0, None); putA(1, Z1); putA(256, ZZ)
    nxt = [38]
    def prod(h, p, q, keep=True):
        if keep:
            d = nxt[0]; nxt[0] += 2
        else: d = 60 + 2*(tcount[0] & 1)
        cmul(d, z[p], z[q]); z[h] = d; putA(h, d)
    prod(2, 1, 1); prod(512, 256, 256); prod(3, 2, 1); prod(768, 512, 256); prod(4, 2, 2); prod(1024, 512, 512)
    prod(6, 4, 2); prod(5, 4, 1, False); prod(7, 4, 3, False)
    for h, p, q in [(258,256,2), (260,256,4), (262,256,6), (516,512,4), (772,768,4), (1280,1024,256), (1536,1024,512), (1792,1024,768), (2048,1024,1024)]:
        prod(h, p, q, False)
    a(f"v_xor_b32 v{W8+1}, 0x80000000, v{W8+1}")
    a(f"v_mov_b32 v14, v{W8}\nv_mov_b32 v15, v{W8+1}")
    for ks in range(8):
        a(f"ds_read_b128 v[{64+4*ks}:{67+4*ks}], v30 offset:{32*ks}")
    a("s_mov_b32 s49, 2\nL_c_bchain:")
    for j in range(16):
        t = 8 + (j & 3)
        a(f"v_cvt_pk_bf16_f32 v{t}, v18, v19")
        cmul(18, 18, 14, 12)
        a(f"ds_write_addtid_b32 v{t} offset:{j*272}")
    a(f"""
    s_add_u32 m0, m0, {16*272}
    s_sub_u32 s49, s49, 1
    s_cmp_lg_u32 s49, 0
    s_cbranch_scc1 L_c_bchain
    s_sub_u32 m0, m0, {32*272}
    """)
    for ks in range(8):
        a(f"ds_read_b128 v[{32+4*ks}:{35+4*ks}], v30 offset:{32*ks}")
    a(f"""
    v_lshrrev_b32 v3, 4, v0
    v_mul_u32_u24 v3, 384, v3
    v_and_b32 v4, 7, v0
    v_lshl_add_u32 v4, v4, 4, v3
    v_and_b32 v5, 15, v0
    v_lshl_add_u32 v3, v5, 4, v3
    v_lshlrev_b32 v5, 4, v0
    s_mul_i32 s51, s41, 12288
    s_add_u32 s51, s51, {WS_XIN}
    s_mov_b32 s52, {WS_STAT}
    s_mov_b32 s53, {WS_STAT+8192}
    """)
    for ks in range(8):
        a(f"s_waitcnt lgkmcnt({7-ks})")
        c = "0" if ks == 0 else "v[96:111]"
        a(f"v_mfma_f32_32x32x16_bf16 v[96:111], v[{64+4*ks}:{67+4*ks}], v[{32+4*ks}:{35+4*ks}], {c}")
    def poll_loads():
        a("""
        buffer_load_dwordx4 v[112:115], v3, s[8:11], s51 offen sc1
        buffer_load_dwordx4 v[116:119], v4, s[8:11], s51 offen offset:256 sc1
        buffer_load_dwordx4 v[120:123], v5, s[8:11], s52 offen sc1
        buffer_load_dwordx4 v[124:127], v5, s[8:11], s53 offen sc1
        """)
    poll_loads()
    for m in range(11):
        a(f"ds_write_addtid_b32 v{96+m} offset:{m*256}")
    a("s_waitcnt lgkmcnt(0)\ns_barrier")
    stamp(5)
    for i in range(9):
        a(f"ds_read2st64_b32 v[{32+4*i}:{33+4*i}], v{GA+i} offset0:0 offset1:34")
        a(f"ds_read2st64_b32 v[{34+4*i}:{35+4*i}], v{GA+i} offset0:68 offset1:102")
        if i == 6: a("s_waitcnt lgkmcnt(10)")
    a("v_mov_b32 v76, 0\nv_mov_b32 v77, 0\nv_mov_b32 v78, 0\nv_mov_b32 v79, 0")
    for i in range(9):
        a(f"s_waitcnt lgkmcnt({min(15,16-2*i)})")
        a(f"v_pk_add_f32 v[{32+4*i}:{33+4*i}], v[{32+4*i}:{33+4*i}], v[{34+4*i}:{35+4*i}]")
        a(f"v_add_f32 v{32+4*i}, v{32+4*i}, v{33+4*i}")
    a("v_cndmask_b32 v32, v32, v76, s[56:57]")
    k = lambda i: 36 + 4*i
    for d in range(4):
        a(f"v_cvt_pk_bf16_f32 v{68+d}, v{k(2*d)}, v{k(2*d+1)}")
    a(f"ds_write_b128 v29, v[68:71] offset:{KOFF+32}")
    for d in range(4):
        a(f"v_cvt_pk_bf16_f32 v{72+d}, v{k(2*d-1)}, v{k(2*d)}")
    a(f"ds_write_b128 v29, v[72:75] offset:{RS+KOFF+64+32}")
    a(f"""
    s_and_saveexec_b64 s[60:61], s[58:59]
    s_cbranch_execz L_c_nokpad
    ds_write_b128 v29, v[76:79] offset:{KOFF}
    ds_write_b128 v29, v[76:79] offset:{RS+KOFF+64}
    L_c_nokpad:
    s_mov_b64 exec, s[60:61]
    """)
    a(f"""
    s_lshl_b32 s49, s55, 16
    s_and_b32 s50, s55, 0xffff0000
    v_mov_b32 v14, 1.0
    v_add_f32 v15, s50, v14
    v_add_f32 v14, s49, v14
    v_and_b32 v7, 8, v0
    v_cmp_ne_u32 s[56:57], 0, v7
    v_lshlrev_b32 v7, 3, v0
    v_sub_u32 v7, {XREV+4088}, v7
    v_mul_u32_u24 v6, 3584, v0
    s_mov_b32 s49, 0
    """)
    stamp(6)
    a(f"""
    L_c_poll:
    s_waitcnt vmcnt(0)
    v_xor_b32 v8, s42, v115
    v_bitop3_b32 v8, v119, s42, v8 bitop3:0xbe
    v_bitop3_b32 v8, v123, s42, v8 bitop3:0xbe
    v_bitop3_b32 v8, v127, s42, v8 bitop3:0xbe
    v_cmp_ne_u32 vcc, 0, v8
    s_cbranch_vccz L_c_polled
    s_add_u32 s49, s49, 1
    s_cmp_ge_u32 s49, {SPIN_MAX}
    s_cbranch_scc1 L_c_polled
    s_mov_b64 exec, vcc
    s_sleep 2
    """)
    poll_loads()
    a("""
    s_branch L_c_poll
    L_c_polled:
    s_mov_b64 exec, -1
    """)
    stamp(7)
    a("v_cndmask_b32 v115, v116, v117, s[56:57]")
    for r in range(4):
        a(f"v_lshlrev_b32 v{16+2*r}, 16, v{112+r}\nv_and_b32 v{17+2*r}, 0xffff0000, v{112+r}")
    a("""
    v_lshlrev_b32 v8, 16, v122
    v_and_b32 v9, 0xffff0000, v122
    v_lshlrev_b32 v10, 16, v126
    v_and_b32 v11, 0xffff0000, v126
    """)
    for r in range(4):
        e = r & 1; mm = 8 + 2*(r >> 1)
        a(f"v_pk_add_f32 v[{32+2*r}:{33+2*r}], v[{16+2*r}:{17+2*r}], v[{mm}:{mm+1}] op_sel:[0,{e}] op_sel_hi:[1,{e}] neg_lo:[0,1] neg_hi:[0,1]")
    for r in range(4):
        e = r & 1; rs = 120 + 4*(r >> 1)
        a(f"v_pk_mul_f32 v[{32+2*r}:{33+2*r}], v[{32+2*r}:{33+2*r}], v[{rs}:{rs+1}] op_sel:[0,{e}] op_sel_hi:[1,{e}]")
    a(f"""
    v_cvt_pk_bf16_f32 v40, v38, v36
    v_cvt_pk_bf16_f32 v41, v34, v32
    v_cvt_pk_bf16_f32 v42, v39, v37
    v_cvt_pk_bf16_f32 v43, v35, v33
    ds_write_b64 v7, v[40:41]
    ds_write_b64 v7, v[42:43] offset:{XCH}
    """)
    for r in range(4):
        a(f"v_pk_fma_f32 v[{16+2*r}:{17+2*r}], v[{32+2*r}:{33+2*r}], v[14:15], v[{16+2*r}:{17+2*r}]")
    a(f"""
    v_and_b32 v8, 15, v1
    v_lshrrev_b32 v9, 4, v1
    s_lshr_b32 s49, s40, 1
    s_and_b32 s50, s40, 1
    s_mul_i32 s51, s49, {4*RS}
    s_lshl_b32 s52, s50, 8
    s_add_u32 s51, s51, s52
    s_add_u32 s51, s51, {KOFF+4+RS+64}
    v_and_b32 v10, 1, v8
    v_mul_u32_u24 v10, {RS+64}, v10
    v_sub_u32 v10, s51, v10
    v_lshrrev_b32 v11, 1, v8
    v_lshl_add_u32 v10, v11, 2, v10
    v_lshl_add_u32 v24, v9, 4, v10
    v_add_u32 v25, 1024, v24
    v_add_u32 v26, 2048, v24
    v_add_u32 v27, 3072, v24
    s_mul_i32 s51, s49, {XCH}
    s_add_u32 s51, s51, s52
    s_add_u32 s51, s51, {XREV+480}
    v_lshlrev_b32 v10, 5, v8
    v_sub_u32 v10, s51, v10
    v_lshl_add_u32 v28, v9, 4, v10
    s_lshl_b32 s51, s49, 2
    s_add_u32 s51, s51, s50
    s_add_u32 s51, s51, 2
    s_mul_i32 s51, s51, {RS}
    v_lshrrev_b32 v10, 5, v1
    v_lshlrev_b32 v10, 6, v10
    v_lshl_add_u32 v10, v1, 3, v10
    v_add_u32 v29, s51, v10
    v_and_b32 v8, 3, v1
    v_lshrrev_b32 v9, 2, v1
    v_lshl_add_u32 v9, v8, 4, v9
    v_lshrrev_b32 v8, 1, v8
    v_lshl_add_u32 v9, v8, 3, v9
    s_mul_i32 s51, s40, 576
    v_lshl_add_u32 v30, v9, 3, s51
    s_waitcnt lgkmcnt(0)
    s_barrier
    """)
    stamp(8)
    if dump == "lds":
        a(f"""
        s_mul_i32 s49, s41, 0x14000
        s_add_u32 s49, s49, {WS_DBG}
        s_cmp_ge_u32 s41, 4
        s_cbranch_scc1 L_nodump
        v_lshlrev_b32 v8, 4, v0
        s_mov_b32 s50, 10
        L_dump:
        ds_read_b128 v[32:35], v8
        s_waitcnt lgkmcnt(0)
        buffer_store_dwordx4 v[32:35], v8, s[8:11], s49 offen
        s_waitcnt vmcnt(0)
        v_add_u32 v8, 8192, v8
        s_sub_u32 s50, s50, 1
        s_cmp_lg_u32 s50, 0
        s_cbranch_scc1 L_dump
        L_nodump:
        s_barrier
        """)
    a("s_cmp_ge_u32 s40, 4\ns_cbranch_scc1 L_c_noconv")
    A = lambda s: 32 + 4*s
    B = lambda u: 64 + 4*u
    C = lambda j: 96 + 4*j
    def ldAB(n):
        o = 128*(n & 1)
        a(f"ds_read2_b32 v[{A(n)}:{A(n)+1}], v{24+(n>>1)} offset0:{o} offset1:{o+1}")
        a(f"ds_read2_b32 v[{A(n)+2}:{A(n)+3}], v{24+(n>>1)} offset0:{o+2} offset1:{o+3}")
        a(f"ds_read_b128 v[{B(n)}:{B(n)+3}], v28 offset:{512*(7-n)}")
    for n in (7, 6, 5, 4): ldAB(n)
    a("s_waitcnt lgkmcnt(3)")
    for n in (0, 1, 2, 3): ldAB(n)
    for j in range(8):
        for r in range(4): a(f"v_mov_b32 v{C(j)+r}, 0")
    a("s_mov_b32 s49, 4\nL_c_conv:")
    for r in (24, 25, 26, 27, 28): a(f"v_add_u32 v{r}, 64, v{r}")
    def mm(s, u): a(f"v_mfma_f32_16x16x32_bf16 v[{C(s+u)}:{C(s+u)+3}], v[{A(s)}:{A(s)+3}], v[{B(u)}:{B(u)+3}], v[{C(s+u)}:{C(s+u)+3}]")
    for n in (7, 6, 5, 4):
        for i in range(8 - n):
            if i == 7 - n: a("s_waitcnt lgkmcnt(9)")
            mm(n, i); mm(i, n)
        ldAB(n)
    for n in (0, 1, 2, 3):
        mm(n, n)
        for i in range(n + 1, 4):
            mm(n, i); mm(i, n)
        if n == 0: a("s_waitcnt lgkmcnt(12)")
        ldAB(n)
    a("""
    s_sub_u32 s49, s49, 1
    s_cmp_lg_u32 s49, 0
    s_cbranch_scc1 L_c_conv
    s_waitcnt lgkmcnt(0)
    """)
    for j in (7, 0, 1, 2, 3, 4, 5, 6):
        a(f"v_cvt_pk_bf16_f32 v{32+2*j}, v{C(j)}, v{C(j)+1}\nv_cvt_pk_bf16_f32 v{33+2*j}, v{C(j)+2}, v{C(j)+3}")
        a(f"ds_write_b64 v29, v[{32+2*j}:{33+2*j}] offset:{576*j}")
    a("s_waitcnt lgkmcnt(0)\nL_c_noconv:\ns_barrier")
    stamp(9)
    for i, rg in enumerate((2, 6, 3, 7)):
        a(f"ds_read_b64 v[{32+2*i}:{33+2*i}], v30 offset:{rg*RS}")
    a("s_mov_b32 s49, 0x3f80\ns_mov_b32 s50, 0x3f800000")
    for hh in range(2):
        a(f"s_waitcnt lgkmcnt({2-2*hh})")
        for r in range(4):
            for ch in range(2):
                a(f"v_dot2c_f32_bf16 v{16+2*r+ch}, s{49+(r&1)}, v{32+4*hh+2*ch+(r>>1)}")
    for r in range(4):
        a(f"v_cvt_pk_bf16_f32 v{40+r}, v{16+2*r}, v{17+2*r}")
        a(f"buffer_store_dword v{40+r}, v6, s[12:15], s48 offen offset:{896*r}")
    stamp(10)
    a(f"""
    s_cmp_lg_u32 s40, 7
    s_cbranch_scc1 L_c_nofp
    v_mul_u32_u24 v8, 3584, v1
    s_lshl_b32 s51, s41, 4
    s_add_u32 s51, s51, {WS_FFN}
    v_mov_b32 v44, 0
    v_mov_b32 v45, 0
    s_mov_b32 s49, 0
    s_mov_b32 exec_hi, 0xffffff
    L_c_fpoll:
    buffer_load_dwordx4 v[44:47], v8, s[8:11], s51 offen sc1
    s_waitcnt vmcnt(0)
    v_cmp_ne_u32 vcc, s42, v47
    s_cbranch_vccz L_c_fpolled
    s_add_u32 s49, s49, 1
    s_cmp_ge_u32 s49, {SPIN_MAX}
    s_cbranch_scc1 L_c_fpolled
    s_mov_b64 exec, vcc
    s_sleep 2
    s_branch L_c_fpoll
    L_c_fpolled:
    s_mov_b64 exec, -1
    v_readfirstlane_b32 s52, v46
    """)
    for sh in (1, 2, 4, 8):
        for r in (44, 45):
            a(f"v_add_f32_dpp v{r}, v{r}, v{r} row_shr:{sh} row_mask:0xf bank_mask:0xf bound_ctrl:0")
    for r in (44, 45): a(f"v_add_f32_dpp v{r}, v{r}, v{r} row_bcast:15 row_mask:0xa bank_mask:0xf")
    for r in (44, 45): a(f"v_add_f32_dpp v{r}, v{r}, v{r} row_bcast:31 row_mask:0xc bank_mask:0xf")
    a(f"""
    v_mov_b32 v46, s52
    v_mov_b32 v8, {MISC}
    s_mov_b32 exec_lo, 0
    s_brev_b32 exec_hi, 1
    ds_write_b128 v8, v[44:47]
    s_cmp_lg_u32 s41, 0
    s_cbranch_scc1 L_c_noep
    v_mov_b32 v9, s42
    buffer_store_dword v9, off, s[8:11], 0
    L_c_noep:
    s_mov_b64 exec, -1
    s_waitcnt lgkmcnt(0)
    L_c_nofp:
    s_barrier
    v_mov_b32 v8, {MISC}
    ds_read_b128 v[44:47], v8
    s_waitcnt lgkmcnt(0)
    v_readfirstlane_b32 s52, v46
    v_lshrrev_b32 v9, 2, v46
    v_cmp_eq_u32 vcc, v9, v0
    s_and_saveexec_b64 s[60:61], vcc
    s_cbranch_execz L_c_end
    s_bitcmp1_b32 s52, 0
    s_cselect_b64 vcc, -1, 0
    v_cndmask_b32 v16, v16, v18, vcc
    v_cndmask_b32 v17, v17, v19, vcc
    v_cndmask_b32 v20, v20, v22, vcc
    v_cndmask_b32 v21, v21, v23, vcc
    s_bitcmp1_b32 s52, 1
    s_cselect_b64 vcc, -1, 0
    v_cndmask_b32 v16, v16, v20, vcc
    v_cndmask_b32 v17, v17, v21, vcc
    v_pk_add_f32 v[16:17], v[16:17], v[44:45]
    v_mul_u32_u24 v9, 896, v46
    v_cvt_pk_bf16_f32 v16, v16, v17
    buffer_store_dword v16, v9, s[12:15], s48 offen
    L_c_end:
    """)
    if stamps:
        a("s_waitcnt vmcnt(0)")
        stamp(11)
    stamp_flush(12)
    a("L_exit:\ns_endpgm")
    F_XS, F_PART, F_MISC = 0, 1024, 5120
    a("""
    L_ffn:
    s_load_dwordx2 s[16:17], s[0:1], 72
    s_load_dwordx2 s[20:21], s[0:1], 80
    s_load_dwordx2 s[24:25], s[0:1], 88
    s_sub_u32 s41, s2, 224
    """)
    srd(16, 1605632); srd(20, 1605632); srd(24, 1605632)
    a("""
    v_and_b32 v3, 15, v1
    v_lshrrev_b32 v4, 4, v1
    v_lshrrev_b32 v5, 3, v3
    v_lshl_add_u32 v5, v5, 2, v4
    v_mul_u32_u24 v5, 28672, v5
    v_and_b32 v6, 7, v3
    v_lshl_add_u32 v5, v6, 4, v5
    s_mul_i32 s44, s40, 229376
    s_lshl_b32 s45, s41, 7
    s_add_u32 s44, s44, s45
    s_add_u32 s45, s44, 7168
    s_add_u32 s46, s44, 14336
    s_add_u32 s47, s44, 21504
    s_and_b32 s50, s40, 3
    s_lshr_b32 s51, s40, 2
    s_lshl_b32 s48, s50, 4
    v_add_u32 v7, s48, v3
    v_mul_u32_u24 v8, 7168, v4
    v_cmp_gt_u32 vcc, 56, v7
    v_lshl_add_u32 v8, v7, 4, v8
    v_mov_b32 v9, 0x7fffffff
    v_lshl_add_u32 v10, v7, 2, v4
    v_lshlrev_b32 v10, 4, v10
    v_cndmask_b32 v8, v9, v8, vcc
    v_cndmask_b32 v10, v9, v10, vcc
    s_lshl_b32 s52, s41, 1
    s_add_u32 s52, s52, s51
    s_mul_i32 s48, s52, 28672
    s_add_u32 s49, s48, 3584
    s_mul_i32 s52, s52, 3584
    """)
    a(f"s_add_u32 s52, s52, {WS_FFN}")
    a("s_waitcnt lgkmcnt(0)")
    stamp(1)
    a("s_load_dword s42, s[8:9], 0")
    G, U, D = 32, 64, 96
    for r in range(8):
        a(f"buffer_load_dwordx4 v[{D+4*r}:{D+4*r+3}], v8, s[24:27], s{48+(r>>2)} offen offset:{896*(r&3)}")
    a("s_cmp_lg_u32 s40, 7\ns_cbranch_scc1 L_f_gu\ns_waitcnt vmcnt(0)\ns_branch L_f_nogu\nL_f_gu:")
    for base, sr in ((G, 16), (U, 20)):
        for r in range(8):
            a(f"buffer_load_dwordx4 v[{base+4*r}:{base+4*r+3}], v5, s[{sr}:{sr+3}], s{44+(r>>1)} offen offset:{3584*(r&1)}")
    a("s_waitcnt vmcnt(16)\nL_f_nogu:")
    a("s_mov_b32 s54, 0x05040100\ns_mov_b32 s55, 0x07060302")
    def transp(b):
        p = lambda rp, d: (b + 8*rp + d, b + 8*rp + 4 + d)
        for i in range(4):
            x, y = p(i, i)
            a(f"v_perm_b32 v12, v{y}, v{x}, s54\nv_perm_b32 v{y}, v{y}, v{x}, s55\nv_mov_b32 v{x}, v12")
        for i in range(4):
            for j in range(i + 1, 4):
                x, y = p(i, j); u, w = p(j, i)
                a(f"""
                v_perm_b32 v12, v{y}, v{x}, s54
                v_perm_b32 v13, v{y}, v{x}, s55
                v_perm_b32 v{x}, v{w}, v{u}, s54
                v_perm_b32 v{y}, v{w}, v{u}, s55
                v_mov_b32 v{u}, v12
                v_mov_b32 v{w}, v13
                """)
    transp(D)
    a("s_cmp_eq_u32 s40, 7\ns_cbranch_scc1 L_f_router")
    a("s_waitcnt vmcnt(8)")
    transp(G)
    a("s_waitcnt vmcnt(0)")
    transp(U)
    a("s_waitcnt lgkmcnt(0)")
    next_tag()
    a("s_branch L_f_join")
    a(f"""
    L_f_router:
    v_lshlrev_b32 v14, 4, v1
    s_mov_b32 s44, {WS_KEY}
    s_mov_b32 s45, {WS_KEY+4096}
    s_waitcnt lgkmcnt(0)
    """)
    next_tag()
    a("s_mov_b32 s46, 0")
    stamp(2)
    a("L_f_kpoll:")
    for i in range(8):
        a(f"buffer_load_dwordx4 v[{32+4*i}:{35+4*i}], v14, s[8:11], s{44+(i>>2)} offen offset:{1024*(i&3)} sc1")
    a("v_mov_b32 v15, 0\nv_mov_b32 v16, 0")
    for i in range(8):
        a(f"s_waitcnt vmcnt({7-i})")
        a(f"v_bitop3_b32 v15, v{33+4*i}, s42, v15 bitop3:0xbe")
        a(f"v_max3_u32 v16, v{32+4*i}, v{34+4*i}, v16")
        a(f"v_bitop3_b32 v15, v{35+4*i}, s42, v15 bitop3:0xbe")
    a(f"""
    v_cmp_ne_u32 vcc, 0, v15
    s_cbranch_vccz L_f_kpolled
    s_add_u32 s46, s46, 1
    s_cmp_ge_u32 s46, {SPIN_MAX}
    s_cbranch_scc1 L_f_kpolled
    s_mov_b64 exec, vcc
    s_sleep 2
    s_branch L_f_kpoll
    L_f_kpolled:
    s_mov_b64 exec, -1
    """)
    stamp(3)
    for sh in (1, 2, 4, 8):
        a(f"v_max_u32_dpp v16, v16, v16 row_shr:{sh} row_mask:0xf bank_mask:0xf")
    a("v_max_u32_dpp v16, v16, v16 row_bcast:15 row_mask:0xa bank_mask:0xf")
    a("v_max_u32_dpp v16, v16, v16 row_bcast:31 row_mask:0xc bank_mask:0xf")
    a(f"""
    v_readlane_b32 s44, v16, 63
    s_and_b32 s45, s44, 0x7ff
    s_sub_u32 s45, 2047, s45
    s_mul_i32 s46, s45, 896
    s_lshr_b32 s47, s45, 2
    s_lshl_b32 s47, s47, 4
    s_bfe_u32 s56, s45, 0x10001
    s_lshl_b32 s56, s56, 13
    s_add_u32 s47, s47, s56
    s_add_u32 s47, s47, {WS_STAT}
    s_mov_b32 exec_hi, 0xffffff
    buffer_load_dwordx4 v[32:35], v14, s[4:7], s46 offen
    s_mov_b32 s46, 0
    L_f_spoll:
    buffer_load_dwordx4 v[36:39], off, s[8:11], s47 sc1
    s_ashr_i32 s56, s44, 31
    s_not_b32 s56, s56
    s_or_b32 s56, s56, 0x80000000
    s_xor_b32 s56, s56, s44
    s_and_b32 s56, s56, 0xffff0000
    v_mov_b32 v17, 0xbfb8aa3b
    v_mul_f32 v17, s56, v17
    v_exp_f32 v17, v17
    v_add_f32 v17, 1.0, v17
    v_rcp_f32 v17, v17
    v_mov_b32 v16, s45
    s_add_u32 s46, s46, 1
    s_cmp_ge_u32 s46, {SPIN_MAX}
    s_cbranch_scc1 L_f_spolled
    s_waitcnt vmcnt(0)
    v_cmp_ne_u32 vcc, s42, v39
    s_cbranch_vccnz L_f_spoll
    L_f_spolled:
    s_waitcnt vmcnt(0)
    """)
    stamp(4)
    a(f"""
    s_bitcmp1_b32 s45, 0
    s_cselect_b64 vcc, -1, 0
    v_lshlrev_b32 v40, 16, v38
    v_and_b32 v41, 0xffff0000, v38
    v_cndmask_b32 v36, v36, v37, vcc
    v_cndmask_b32 v37, v40, v41, vcc
    """)
    for d in range(4):
        a(f"v_lshlrev_b32 v{40+2*d}, 16, v{32+d}\nv_and_b32 v{41+2*d}, 0xffff0000, v{32+d}")
    for d in range(4):
        a(f"v_pk_add_f32 v[{40+2*d}:{41+2*d}], v[{40+2*d}:{41+2*d}], v[36:37] op_sel:[0,1] op_sel_hi:[1,1] neg_lo:[0,1] neg_hi:[0,1]")
    for d in range(4):
        a(f"v_pk_mul_f32 v[{40+2*d}:{41+2*d}], v[{40+2*d}:{41+2*d}], v[36:37] op_sel:[0,0] op_sel_hi:[1,0]")
    for d in range(4):
        a(f"v_cvt_pk_bf16_f32 v{32+d}, v{40+2*d}, v{41+2*d}")
    a(f"""
    ds_write_b128 v14, v[32:35] offset:{F_XS}
    v_mov_b32 v15, {F_MISC}
    ds_write_b64 v15, v[16:17]
    s_mov_b64 exec, -1
    L_f_join:
    """)
    a(f"""
    v_and_b32 v14, 1, v3
    v_lshlrev_b32 v14, 6, v14
    v_lshl_add_u32 v14, v4, 4, v14
    s_lshl_b32 s44, s40, 7
    v_add_u32 v14, s44, v14
    v_lshl_add_u32 v15, v6, 2, v4
    v_lshlrev_b32 v15, 4, v15
    s_lshl_b32 s44, s40, 9
    v_add_u32 v15, s44, v15
    v_lshl_add_u32 v16, v4, 3, v6
    v_lshlrev_b32 v16, 3, v16
    s_lshl_b32 s44, s51, 8
    v_add_u32 v16, s44, v16
    v_mov_b32 v17, {F_MISC}
    s_waitcnt lgkmcnt(0)
    s_barrier
    """)
    stamp(5)
    a(f"""
    ds_read_b64 v[30:31], v17
    s_cmp_eq_u32 s40, 7
    s_cbranch_scc1 L_f_nogu2
    ds_read_b128 v[20:23], v14 offset:{F_XS}
    s_waitcnt lgkmcnt(0)
    """)
    def dreg(n): return 24 if n == 0 else 32 + 4*(n-1)
    def red(n):
        mtx, c = n >> 3, n & 7
        a(f"v_add_f32_dpp v{4+2*(c&1)+mtx}, v{dreg(n)+1}, v{dreg(n)} row_ror:8 row_mask:{hex(1<<(c>>1))} bank_mask:0xf")
    for n in range(16):
        a(f"v_mfma_f32_16x16x32_bf16 v[{dreg(n)}:{dreg(n)+3}], v[20:23], v[{32+4*n}:{35+4*n}], 0")
        if n >= 8: red(n - 8)
    for n in range(8, 16): red(n)
    a(f"""
    s_mov_b32 exec_lo, 0x00ff00ff
    s_mov_b32 exec_hi, 0x00ff00ff
    ds_write_b128 v15, v[4:7] offset:{F_PART}
    s_mov_b64 exec, -1
    L_f_nogu2:
    s_waitcnt lgkmcnt(0)
    s_barrier
    """)
    stamp(6)
    for w in range(7):
        a(f"ds_read_b64 v[{32+2*w}:{33+2*w}], v16 offset:{F_PART+512*w}")
    a("""
    s_waitcnt lgkmcnt(5)
    v_pk_add_f32 v[32:33], v[32:33], v[34:35]
    s_waitcnt lgkmcnt(3)
    v_pk_add_f32 v[36:37], v[36:37], v[38:39]
    s_waitcnt lgkmcnt(1)
    v_pk_add_f32 v[40:41], v[40:41], v[42:43]
    v_pk_add_f32 v[32:33], v[32:33], v[36:37]
    s_waitcnt lgkmcnt(0)
    v_pk_add_f32 v[40:41], v[40:41], v[44:45]
    v_pk_add_f32 v[32:33], v[32:33], v[40:41]
    v_mul_f32 v34, 0xbfb8aa3b, v32
    v_exp_f32 v34, v34
    v_mul_f32 v32, v32, v33
    v_add_f32 v34, 1.0, v34
    v_rcp_f32 v34, v34
    v_mov_b32 v6, v30
    v_mul_f32 v32, v32, v34
    v_mov_b32 v7, s42
    v_mov_b32_dpp v33, v32 quad_perm:[1,1,3,3] row_mask:0xf bank_mask:0xf
    v_cvt_pk_bf16_f32 v32, v32, v33
    """)
    for q in range(4):
        a(f"v_mov_b32_dpp v{20+q}, v32 row_newbcast:{2*q} row_mask:0xf bank_mask:0xf")
    for c in range(8):
        a(f"v_mfma_f32_16x16x32_bf16 v[{40+4*c}:{43+4*c}], v[20:23], v[{D+4*c}:{D+4*c+3}], 0")
    for c in range(8):
        a(f"v_mul_f32_dpp v{4+(c&1)}, v{40+4*c}, v31 quad_perm:[0,1,2,3] row_mask:{hex(1<<(c>>1))} bank_mask:0xf")
    a("buffer_store_dwordx4 v[4:7], v10, s[8:11], s52 offen sc1")
    stamp(7)
    if stamps:
        a("s_waitcnt vmcnt(0)")
        stamp(8)
    stamp_flush(9)
    a("s_endpgm")
    npad = a.pad(verbose=bool(os.environ.get("PADV")))
    hdr = open(os.path.join(os.path.dirname(__file__), "header.txt")).read()
    src = hdr + f"""; @launch grid=(252,1,1) block=(512,1,1) lds={LDS_BYTES}
.amdgcn_target "amdgcn-amd-amdhsa--gfx950"
.text
.globl {KN}
.p2align 8
.type {KN},@function
""" + a.text() + f""".section .rodata,"a"
.p2align 6
.amdhsa_kernel {KN}
  .amdhsa_next_free_vgpr 128
  .amdhsa_next_free_sgpr {96 if stamps else 64}
  .amdhsa_accum_offset 128
  .amdhsa_group_segment_fixed_size 0
  .amdhsa_kernarg_size 120
  .amdhsa_user_sgpr_count 2
  .amdhsa_user_sgpr_kernarg_segment_ptr 1
  .amdhsa_system_sgpr_workgroup_id_x 1
.end_amdhsa_kernel
"""
    return src

if __name__ == "__main__":
    out = sys.argv[1]
    opts = sys.argv[2:]
    open(out, "w").write(gen(stamps="stamps" in opts, dump="lds" if "lds" in opts else None))
```

```python
import sys, os
sys.path.insert(0, os.path.dirname(__file__))
from asmlib import Asm
NAME = "parallel_sum__ssm_conv_s4d__moe_arch_mod__prompt"
KN = NAME + "_kernel"

WS_STAT = 0x1000
WS_KEY  = 0x5000
WS_FFN  = 0x8000
WS_XIN  = 0x40000
WS_DBG  = 0x800000
WS_SIZE = 0x1000000
RS   = 8704
XREV = 8*RS
XCH  = 4576
MISC = XREV + 2*XCH
LDS_BYTES = MISC + 64
KOFF = 3072
LOG2E = 0x3fb8aa3b
SPIN_MAX = 200000

def gen(stamps=False, dump=None, probe=None):
    a = Asm()
    nst = [0]
    role = ["c"]
    def stamp(k):
        if stamps or (probe and (k == 0 or (probe[0] == role[0] and probe[1] == k))): a(f"s_memrealtime s[{64+2*k}:{65+2*k}]")
    def probe_end(lbl, waves):
        if not probe: return
        a("s_waitcnt vmcnt(0) lgkmcnt(0)")
        a("s_add_u32 s90, s64, 3000")
        if probe[0] == "x":
            a(f"s_getreg_b32 s91, hwreg(HW_REG_XCC_ID)\ns_and_b32 s91, s91, 15\ns_cmp_eq_u32 s91, {probe[1]}\ns_cbranch_scc1 {lbl}\ns_mov_b32 s90, s64")
        if probe[0] == role[0]:
            lo, hi = probe[2]
            a(f"s_cmp_lt_u32 s40, {lo}\ns_cbranch_scc1 {lbl}\ns_cmp_gt_u32 s40, {hi}\ns_cbranch_scc1 {lbl}")
            a(f"s_sub_u32 s91, s{64+2*probe[1]}, s64\ns_lshl_b32 s91, s91, 2\ns_add_u32 s90, s90, s91")
        a(f"{lbl}:\ns_memrealtime s[92:93]\ns_waitcnt lgkmcnt(0)\ns_sub_u32 s92, s92, s90\ns_cmp_lt_i32 s92, 0\ns_cbranch_scc1 {lbl}")
    def stamp_flush(n):
        if not stamps: return
        a("s_waitcnt lgkmcnt(0)")
        a("s_lshl_b32 s62, s2, 3\ns_add_u32 s62, s62, s40\ns_lshl_b32 s62, s62, 6")
        a(f"s_add_u32 s62, s62, {WS_DBG}")
        a("s_mov_b64 exec, 1")
        a("v_mov_b32 v1, 0")
        for k in range(n):
            a(f"v_mov_b32 v2, s{64+2*k}\nbuffer_store_dword v2, v1, s[8:11], s62 offen offset:{4*k}")
    def srd(base, size):
        a(f"s_mov_b32 s{base+2}, {size}\ns_mov_b32 s{base+3}, 0x20000")
    def cmul(d, x, y, t=None):
        t = d if t is None else t
        a(f"v_pk_mul_f32 v[{t}:{t+1}], v[{x}:{x+1}], v[{y}:{y+1}] op_sel_hi:[0,1]")
        a(f"v_pk_fma_f32 v[{d}:{d+1}], v[{x}:{x+1}], v[{y}:{y+1}], v[{t}:{t+1}] op_sel:[1,1,0] op_sel_hi:[1,0,1] neg_lo:[0,1,0]")
    def next_tag():
        a("s_mul_i32 s42, s42, 0x9e3779b1\ns_add_u32 s42, s42, 0x7f4a7c15")

    a(f"{KN}:")
    stamp(0)
    a(f"""
    s_cmp_ge_u32 s2, 252
    s_cbranch_scc1 L_exit
    s_load_dwordx2 s[4:5], s[0:1], 0
    s_load_dwordx2 s[8:9], s[0:1], 112
    v_lshrrev_b32 v2, 6, v0
    v_and_b32 v1, 63, v0
    s_and_b32 s43, s2, 7
    v_readfirstlane_b32 s40, v2
    s_lshr_b32 s44, s2, 3
    """)
    srd(4, 1835008); srd(8, WS_SIZE)
    a("""
    s_cmp_ge_u32 s44, 28
    s_cbranch_scc1 L_ffn
    """)
    a("""
    s_load_dwordx2 s[32:33], s[0:1], 64
    s_load_dwordx2 s[16:17], s[0:1], 8
    s_load_dwordx2 s[20:21], s[0:1], 16
    s_load_dwordx2 s[24:25], s[0:1], 24
    s_load_dwordx2 s[28:29], s[0:1], 32
    s_load_dwordx4 s[36:39], s[0:1], 40
    s_load_dwordx2 s[12:13], s[0:1], 96
    s_mul_i32 s41, s43, 28
    s_add_u32 s41, s41, s44
    """)
    srd(32, 896); srd(16, 229376); srd(20, 229376); srd(24, 229376); srd(28, 229376); srd(12, 1835008)
    a("""
    s_mul_i32 s45, s40, 224
    s_add_u32 s45, s45, s41
    s_mul_i32 s46, s45, 1792
    s_lshl_b32 s47, s41, 10
    s_lshl_b32 s48, s41, 2
    """)
    a("""
    v_and_b32 v3, 31, v1
    v_lshrrev_b32 v5, 5, v1
    v_cmp_gt_u32 vcc, 28, v3
    v_lshlrev_b32 v3, 5, v3
    v_mul_u32_u24 v4, 896, v5
    v_add_u32 v4, v4, v3
    v_mov_b32 v6, 0x7fffffff
    v_cndmask_b32 v4, v6, v4, vcc
    v_lshlrev_b32 v6, 1, v0
    v_mov_b32 v16, 0
    v_mov_b32 v17, 0
    v_mov_b32 v18, 0
    v_mov_b32 v19, 0
    """)
    a("""
    v_and_b32 v7, 3, v1
    v_bfe_u32 v8, v1, 4, 1
    v_lshl_add_u32 v7, v8, 2, v7
    v_bfe_u32 v8, v1, 2, 2
    v_lshl_add_u32 v8, v5, 2, v8
    v_and_b32 v9, 3, v2
    v_lshl_add_u32 v8, v9, 3, v8
    v_mul_u32_u24 v9, 3584, v7
    v_lshl_add_u32 v9, v8, 2, v9
    v_mul_u32_u24 v10, 12288, v8
    v_lshl_add_u32 v10, v7, 4, v10
    s_and_b32 s49, s41, 31
    s_lshr_b32 s50, s41, 5
    s_mul_i32 s51, s49, 57344
    s_lshl_b32 s52, s50, 7
    s_add_u32 s51, s51, s52
    s_add_u32 s52, s51, 28672
    s_mul_i32 s53, s50, 393216
    s_mul_i32 s49, s49, 384
    s_add_u32 s53, s53, s49
    """)
    a(f"s_add_u32 s53, s53, {WS_XIN}")
    stamp(12)
    a("s_waitcnt lgkmcnt(0)")
    stamp(1)
    a("""
    s_load_dword s42, s[8:9], 0
    s_load_dword s54, s[36:37], s48
    s_load_dword s55, s[38:39], s48
    s_cmp_ge_u32 s45, 1024
    s_cbranch_scc1 L_c_nost0
    buffer_load_dwordx4 v[32:35], v4, s[4:7], s46 offen
    buffer_load_dwordx4 v[36:39], v4, s[4:7], s46 offen offset:16
    buffer_load_dwordx4 v[40:43], v3, s[32:35], 0 offen
    buffer_load_dwordx4 v[44:47], v3, s[32:35], 0 offen offset:16
    L_c_nost0:
    buffer_load_short_d16_hi v16, v6, s[16:19], s47 offen
    buffer_load_short_d16_hi v17, v6, s[20:23], s47 offen
    buffer_load_short_d16_hi v18, v6, s[24:27], s47 offen
    buffer_load_short_d16_hi v19, v6, s[28:31], s47 offen
    s_cmp_lt_u32 s40, 4
    s_cbranch_scc1 L_c_notile0
    """)
    for k, r in enumerate([64, 65, 66, 72]):
        a(f"buffer_load_dword v{r}, v9, s[4:7], s51 offen offset:{k*896}")
    for k, r in enumerate([68, 69, 70, 73]):
        a(f"buffer_load_dword v{r}, v9, s[4:7], s52 offen offset:{k*896}")
    a("L_c_notile0:")
    O = {0:0, 8:4, 1:9*128, 4:10*128, 2:14*128, 6:16*128, 3:18*128, 5:19*128, 7:20*128}
    GA = 20
    a(f"""
    v_and_b32 v11, 255, v0
    v_lshrrev_b32 v12, 8, v0
    v_mul_u32_u24 v12, {4*RS}, v12
    v_lshl_add_u32 v{GA+1}, v11, 2, v12
    v_lshl_add_u32 v29, v11, 4, v12
    v_cmp_gt_u32 s[56:57], 32, v11
    v_cmp_gt_u32 s[58:59], 64, v11
    v_cmp_gt_u32 s[60:61], 33, v11
    v_cmp_gt_u32 vcc, 0x80, v11
    v_add_u32 v13, 4, v{GA+1}
    v_add_u32 v14, {O[4]}, v{GA+1}
    v_and_b32 v15, 1, v11
    v_lshl_add_u32 v15, v15, 2, v{GA+1}
    v_cndmask_b32 v{GA+5}, v15, v14, vcc
    v_cndmask_b32 v15, v{GA+1}, v14, vcc
    v_cndmask_b32 v14, v13, v14, vcc
    v_add_u32 v12, {O[1]}, v{GA+1}
    v_cndmask_b32 v{GA+2}, v{GA+1}, v12, s[56:57]
    v_add_u32 v12, {O[2]}, v{GA+1}
    v_cndmask_b32 v{GA+3}, v{GA+1}, v12, s[58:59]
    v_add_u32 v12, {O[3]}, v{GA+1}
    v_cndmask_b32 v{GA+4}, v15, v12, s[56:57]
    v_add_u32 v12, {O[5]}, v{GA+1}
    v_cndmask_b32 v{GA+6}, v14, v12, s[56:57]
    v_add_u32 v12, {O[6]}, v{GA+1}
    v_cndmask_b32 v{GA+7}, v13, v12, s[58:59]
    v_add_u32 v12, {O[7]}, v{GA+1}
    v_cndmask_b32 v{GA+8}, v13, v12, s[56:57]
    v_add_u32 v12, {O[7]-4}, v{GA+1}
    v_cndmask_b32 v{GA}, v{GA+1}, v12, s[60:61]
    v_cmp_eq_u32 s[56:57], 0, v11
    v_cmp_gt_u32 s[58:59], 2, v11
    """)
    a(f"""
    v_mov_b32 v48, 0
    v_mov_b32 v49, 0
    v_mov_b32 v50, 0
    v_mov_b32 v51, 0
    v_mul_u32_u24 v12, {XCH}, v2
    v_lshl_add_u32 v12, v1, 4, v12
    v_add_u32 v12, {XREV+4096}, v12
    v_cmp_gt_u32 vcc, 30, v1
    s_cmp_ge_u32 s40, 2
    s_cbranch_scc1 L_c_nopad
    s_and_saveexec_b64 s[60:61], vcc
    ds_write_b128 v12, v[48:51]
    s_mov_b64 exec, s[60:61]
    L_c_nopad:
    s_mul_i32 s49, s40, {RS}
    s_mov_b32 m0, s49
    v_and_b32 v30, 31, v1
    v_mul_u32_u24 v30, 272, v30
    v_lshl_add_u32 v30, v5, 4, v30
    v_add_u32 v30, s49, v30
    """)
    a("s_waitcnt lgkmcnt(0)")
    next_tag()
    a("s_barrier")
    stamp(2)
    a("""
    s_cmp_ge_u32 s45, 1024
    s_cbranch_scc1 L_c_nost1
    s_cmp_lt_u32 s40, 4
    s_cbranch_scc1 L_c_w4
    s_waitcnt vmcnt(12)
    s_branch L_c_w4j
    L_c_w4:
    s_waitcnt vmcnt(4)
    L_c_w4j:
    s_mov_b32 s49, 0x3f803f80
    """)
    stamp(3)
    for i in range(8):
        a(f"""
        v_dot2c_f32_bf16 v48, s49, v{32+i}
        v_dot2c_f32_bf16 v49, v{32+i}, v{32+i}
        v_dot2c_f32_bf16 v50, v{32+i}, v{40+i}
        v_dot2c_f32_bf16 v51, s49, v{40+i}
        """)
    for sh in (1, 2, 4, 8):
        for r in (48, 49, 50, 51):
            a(f"v_add_f32_dpp v{r}, v{r}, v{r} row_shr:{sh} row_mask:0xf bank_mask:0xf bound_ctrl:0")
    for r in (48, 49, 50, 51):
        a(f"v_add_f32_dpp v{r}, v{r}, v{r} row_bcast:15 row_mask:0xa bank_mask:0xf")
    a(f"""
    v_mul_f32 v48, 0x3b124925, v48
    v_mul_f32 v49, 0x3b124925, v49
    v_fma_f32 v49, -v48, v48, v49
    v_max_f32 v49, 0, v49
    v_cvt_pk_bf16_f32 v52, v49, v48
    v_lshlrev_b32 v49, 16, v52
    v_add_f32 v49, 0x3727c5ac, v49
    v_cvt_pk_bf16_f32 v49, v49, v49
    v_lshlrev_b32 v49, 16, v49
    v_sqrt_f32 v49, v49
    v_and_b32 v54, 0xffff0000, v52
    v_cvt_pk_bf16_f32 v49, v49, v49
    v_lshlrev_b32 v49, 16, v49
    v_rcp_f32 v53, v49
    v_fma_f32 v50, -v54, v51, v50
    v_mov_b32 v55, s42
    v_mul_f32 v50, v50, v53
    v_mov_b32_dpp v52, v53 row_bcast:31 row_mask:0xc bank_mask:0xf
    v_mov_b32_dpp v48, v54 row_bcast:31 row_mask:0xc bank_mask:0xf
    v_cvt_pk_bf16_f32 v50, v50, v50
    v_lshrrev_b32 v48, 16, v48
    v_ashrrev_i32 v51, 31, v50
    v_or_b32 v54, v54, v48
    v_or_b32 v51, 0x80000000, v51
    s_lshl_b32 s49, s45, 1
    s_sub_u32 s49, 2047, s49
    v_xor_b32 v50, v50, v51
    v_sub_u32 v51, s49, v5
    s_mov_b32 s49, 0xffff0000
    v_and_or_b32 v56, v50, s49, v51
    v_mov_b32 v57, s42
    s_and_b32 s49, s45, 1
    s_lshl_b32 s49, s49, 13
    v_max_u32_dpp v56, v56, v56 row_bcast:31 row_mask:0xc bank_mask:0xf
    s_lshr_b32 s50, s45, 1
    s_lshl_b32 s50, s50, 4
    s_add_u32 s49, s49, s50
    s_add_u32 s49, s49, {WS_STAT}
    s_lshl_b32 s50, s45, 3
    s_add_u32 s50, s50, {WS_KEY}
    s_mov_b32 exec_lo, 0
    s_brev_b32 exec_hi, 1
    buffer_store_dwordx4 v[52:55], off, s[8:11], s49 sc1
    buffer_store_dwordx2 v[56:57], off, s[8:11], s50 sc1
    s_mov_b64 exec, -1
    s_waitcnt vmcnt(2)
    s_branch L_c_st1j
    L_c_nost1:
    s_waitcnt vmcnt(0)
    L_c_st1j:
    s_cmp_lt_u32 s40, 4
    s_cbranch_scc1 L_c_notile1
    v_mov_b32 v67, s42
    v_mov_b32 v71, s42
    v_mov_b32 v75, s42
    buffer_store_dwordx4 v[64:67], v10, s[8:11], s53 offen sc1
    buffer_store_dwordx4 v[68:71], v10, s[8:11], s53 offen offset:128 sc1
    buffer_store_dwordx4 v[72:75], v10, s[8:11], s53 offen offset:256 sc1
    s_branch L_c_tile1j
    L_c_notile1:
    s_lshl_b32 s54, s54, 16
    L_c_tile1j:
    """)
    stamp(4)
    a(f"""
    s_and_b32 s54, s54, 0xffff0000
    v_mov_b32 v3, {LOG2E}
    v_mul_f32 v4, s54, v3
    v_mul_f32 v16, v16, v3
    v_exp_f32 v4, v4
    v_exp_f32 v16, v16
    v_cvt_pk_bf16_f32 v4, v4, v16
    v_and_b32 v16, 0xffff0000, v4
    v_lshlrev_b32 v4, 16, v4
    v_mul_f32 v16, v16, v4
    v_mul_f32 v17, v17, v4
    v_add_f32 v4, v4, v4
    v_mul_f32 v16, 0xbfb8aa3b, v16
    v_mul_f32 v17, 0.15915494, v17
    v_mul_f32 v18, v18, v4
    v_mul_f32 v19, -v19, v4
    """)
    Z1, W8, ZZ = 32, 34, 36
    def cis(d, k):
        if k == 1:
            a(f"v_fract_f32 v7, v17\nv_exp_f32 v6, v16")
        else:
            a(f"v_mul_f32 v7, {k}, v17\nv_mul_f32 v6, {k}, v16\nv_fract_f32 v7, v7\nv_exp_f32 v6, v6")
        a(f"v_cos_f32 v{d}, v7\nv_sin_f32 v{d+1}, v7")
        a(f"v_pk_mul_f32 v[{d}:{d+1}], v[{d}:{d+1}], v[6:7] op_sel_hi:[1,0]")
    cis(Z1, 1); cis(ZZ, "0x43800000"); cis(W8, "0x41000000")
    slot_of = {0:0, 256:1, 512:2, 768:3, 1024:4, 1280:5, 1536:6, 1792:7, 2048:8, 1:9, 4:10, 260:11, 516:12, 772:13,
               2:14, 258:15, 6:16, 262:17, 3:18, 5:19, 7:20}
    tcount = [0]
    def putA(h, r):
        s = slot_of[h]; m, e = s >> 1, s & 1
        row = 8*(m >> 2) + 4*e + (m & 3)
        t = 8 + (tcount[0] & 3); tcount[0] += 1
        if r is None: a(f"v_mov_b32 v{t}, 0x3f80")
        else: a(f"v_cvt_pk_bf16_f32 v{t}, v{r}, v{r+1}")
        a(f"ds_write_addtid_b32 v{t} offset:{row*272}")
    z = {1: Z1, 256: ZZ}
    putA(0, None); putA(1, Z1); putA(256, ZZ)
    nxt = [38]
    def prod(h, p, q, keep=True):
        if keep:
            d = nxt[0]; nxt[0] += 2
        else: d = 60 + 2*(tcount[0] & 1)
        cmul(d, z[p], z[q]); z[h] = d; putA(h, d)
    prod(2, 1, 1); prod(512, 256, 256); prod(3, 2, 1); prod(768, 512, 256); prod(4, 2, 2); prod(1024, 512, 512)
    prod(6, 4, 2); prod(5, 4, 1, False); prod(7, 4, 3, False)
    for h, p, q in [(258,256,2), (260,256,4), (262,256,6), (516,512,4), (772,768,4), (1280,1024,256), (1536,1024,512), (1792,1024,768), (2048,1024,1024)]:
        prod(h, p, q, False)
    a(f"v_xor_b32 v{W8+1}, 0x80000000, v{W8+1}")
    a(f"v_mov_b32 v14, v{W8}\nv_mov_b32 v15, v{W8+1}")
    for ks in range(8):
        a(f"ds_read_b128 v[{64+4*ks}:{67+4*ks}], v30 offset:{32*ks}")
    a("s_mov_b32 s49, 2\nL_c_bchain:")
    for j in range(16):
        t = 8 + (j & 3)
        a(f"v_cvt_pk_bf16_f32 v{t}, v18, v19")
        cmul(18, 18, 14, 12)
        a(f"ds_write_addtid_b32 v{t} offset:{j*272}")
    a(f"""
    s_add_u32 m0, m0, {16*272}
    s_sub_u32 s49, s49, 1
    s_cmp_lg_u32 s49, 0
    s_cbranch_scc1 L_c_bchain
    s_sub_u32 m0, m0, {32*272}
    """)
    for ks in range(8):
        a(f"ds_read_b128 v[{32+4*ks}:{35+4*ks}], v30 offset:{32*ks}")
    a(f"""
    v_lshrrev_b32 v3, 4, v0
    v_mul_u32_u24 v3, 384, v3
    v_and_b32 v4, 7, v0
    v_lshl_add_u32 v4, v4, 4, v3
    v_and_b32 v5, 15, v0
    v_lshl_add_u32 v3, v5, 4, v3
    v_lshlrev_b32 v5, 4, v0
    s_mul_i32 s51, s41, 12288
    s_add_u32 s51, s51, {WS_XIN}
    s_mov_b32 s52, {WS_STAT}
    s_mov_b32 s53, {WS_STAT+8192}
    """)
    for ks in range(8):
        a(f"s_waitcnt lgkmcnt({7-ks})")
        c = "0" if ks == 0 else "v[96:111]"
        a(f"v_mfma_f32_32x32x16_bf16 v[96:111], v[{64+4*ks}:{67+4*ks}], v[{32+4*ks}:{35+4*ks}], {c}")
    def poll_loads():
        a("""
        buffer_load_dwordx4 v[112:115], v3, s[8:11], s51 offen sc1
        buffer_load_dwordx4 v[116:119], v4, s[8:11], s51 offen offset:256 sc1
        buffer_load_dwordx4 v[120:123], v5, s[8:11], s52 offen sc1
        buffer_load_dwordx4 v[124:127], v5, s[8:11], s53 offen sc1
        """)
    poll_loads()
    for m in range(11):
        a(f"ds_write_addtid_b32 v{96+m} offset:{m*256}")
    a("s_waitcnt lgkmcnt(0)\ns_barrier")
    stamp(5)
    for i in range(9):
        a(f"ds_read2st64_b32 v[{32+4*i}:{33+4*i}], v{GA+i} offset0:0 offset1:34")
        a(f"ds_read2st64_b32 v[{34+4*i}:{35+4*i}], v{GA+i} offset0:68 offset1:102")
        if i == 6: a("s_waitcnt lgkmcnt(10)")
    a("v_mov_b32 v76, 0\nv_mov_b32 v77, 0\nv_mov_b32 v78, 0\nv_mov_b32 v79, 0")
    for i in range(9):
        a(f"s_waitcnt lgkmcnt({min(15,16-2*i)})")
        a(f"v_pk_add_f32 v[{32+4*i}:{33+4*i}], v[{32+4*i}:{33+4*i}], v[{34+4*i}:{35+4*i}]")
        a(f"v_add_f32 v{32+4*i}, v{32+4*i}, v{33+4*i}")
    a("v_cndmask_b32 v32, v32, v76, s[56:57]")
    k = lambda i: 36 + 4*i
    for d in range(4):
        a(f"v_cvt_pk_bf16_f32 v{68+d}, v{k(2*d)}, v{k(2*d+1)}")
    a(f"ds_write_b128 v29, v[68:71] offset:{KOFF+32}")
    for d in range(4):
        a(f"v_cvt_pk_bf16_f32 v{72+d}, v{k(2*d-1)}, v{k(2*d)}")
    a(f"ds_write_b128 v29, v[72:75] offset:{RS+KOFF+64+32}")
    a(f"""
    s_and_saveexec_b64 s[60:61], s[58:59]
    s_cbranch_execz L_c_nokpad
    ds_write_b128 v29, v[76:79] offset:{KOFF}
    ds_write_b128 v29, v[76:79] offset:{RS+KOFF+64}
    L_c_nokpad:
    s_mov_b64 exec, s[60:61]
    """)
    a(f"""
    s_lshl_b32 s49, s55, 16
    s_and_b32 s50, s55, 0xffff0000
    v_mov_b32 v14, 1.0
    v_add_f32 v15, s50, v14
    v_add_f32 v14, s49, v14
    v_and_b32 v7, 8, v0
    v_cmp_ne_u32 s[56:57], 0, v7
    v_lshlrev_b32 v7, 3, v0
    v_sub_u32 v7, {XREV+4088}, v7
    v_mul_u32_u24 v6, 3584, v0
    s_mov_b32 s49, 0
    """)
    stamp(6)
    a(f"""
    L_c_poll:
    s_waitcnt vmcnt(0)
    v_xor_b32 v8, s42, v115
    v_bitop3_b32 v8, v119, s42, v8 bitop3:0xbe
    v_bitop3_b32 v8, v123, s42, v8 bitop3:0xbe
    v_bitop3_b32 v8, v127, s42, v8 bitop3:0xbe
    v_cmp_ne_u32 vcc, 0, v8
    s_cbranch_vccz L_c_polled
    s_add_u32 s49, s49, 1
    s_cmp_ge_u32 s49, {SPIN_MAX}
    s_cbranch_scc1 L_c_polled
    s_mov_b64 exec, vcc
    s_sleep 2
    """)
    poll_loads()
    a("""
    s_branch L_c_poll
    L_c_polled:
    s_mov_b64 exec, -1
    """)
    stamp(7)
    a("v_cndmask_b32 v115, v116, v117, s[56:57]")
    for r in range(4):
        a(f"v_lshlrev_b32 v{16+2*r}, 16, v{112+r}\nv_and_b32 v{17+2*r}, 0xffff0000, v{112+r}")
    a("""
    v_lshlrev_b32 v8, 16, v122
    v_and_b32 v9, 0xffff0000, v122
    v_lshlrev_b32 v10, 16, v126
    v_and_b32 v11, 0xffff0000, v126
    """)
    for r in range(4):
        e = r & 1; mm = 8 + 2*(r >> 1)
        a(f"v_pk_add_f32 v[{32+2*r}:{33+2*r}], v[{16+2*r}:{17+2*r}], v[{mm}:{mm+1}] op_sel:[0,{e}] op_sel_hi:[1,{e}] neg_lo:[0,1] neg_hi:[0,1]")
    for r in range(4):
        e = r & 1; rs = 120 + 4*(r >> 1)
        a(f"v_pk_mul_f32 v[{32+2*r}:{33+2*r}], v[{32+2*r}:{33+2*r}], v[{rs}:{rs+1}] op_sel:[0,{e}] op_sel_hi:[1,{e}]")
    a(f"""
    v_cvt_pk_bf16_f32 v40, v38, v36
    v_cvt_pk_bf16_f32 v41, v34, v32
    v_cvt_pk_bf16_f32 v42, v39, v37
    v_cvt_pk_bf16_f32 v43, v35, v33
    ds_write_b64 v7, v[40:41]
    ds_write_b64 v7, v[42:43] offset:{XCH}
    """)
    for r in range(4):
        a(f"v_pk_fma_f32 v[{16+2*r}:{17+2*r}], v[{32+2*r}:{33+2*r}], v[14:15], v[{16+2*r}:{17+2*r}]")
    a(f"""
    v_and_b32 v8, 15, v1
    v_lshrrev_b32 v9, 4, v1
    s_lshr_b32 s49, s40, 1
    s_and_b32 s50, s40, 1
    s_mul_i32 s51, s49, {4*RS}
    s_lshl_b32 s52, s50, 8
    s_add_u32 s51, s51, s52
    s_add_u32 s51, s51, {KOFF+4+RS+64}
    v_and_b32 v10, 1, v8
    v_mul_u32_u24 v10, {RS+64}, v10
    v_sub_u32 v10, s51, v10
    v_lshrrev_b32 v11, 1, v8
    v_lshl_add_u32 v10, v11, 2, v10
    v_lshl_add_u32 v24, v9, 4, v10
    v_add_u32 v25, 1024, v24
    v_add_u32 v26, 2048, v24
    v_add_u32 v27, 3072, v24
    s_mul_i32 s51, s49, {XCH}
    s_add_u32 s51, s51, s52
    s_add_u32 s51, s51, {XREV+480}
    v_lshlrev_b32 v10, 5, v8
    v_sub_u32 v10, s51, v10
    v_lshl_add_u32 v28, v9, 4, v10
    s_lshl_b32 s51, s49, 2
    s_add_u32 s51, s51, s50
    s_add_u32 s51, s51, 2
    s_mul_i32 s51, s51, {RS}
    v_lshrrev_b32 v10, 5, v1
    v_lshlrev_b32 v10, 6, v10
    v_lshl_add_u32 v10, v1, 3, v10
    v_add_u32 v29, s51, v10
    v_and_b32 v8, 3, v1
    v_lshrrev_b32 v9, 2, v1
    v_lshl_add_u32 v9, v8, 4, v9
    v_lshrrev_b32 v8, 1, v8
    v_lshl_add_u32 v9, v8, 3, v9
    s_mul_i32 s51, s40, 576
    v_lshl_add_u32 v30, v9, 3, s51
    s_waitcnt lgkmcnt(0)
    s_barrier
    """)
    stamp(8)
    if dump == "lds":
        a(f"""
        s_mul_i32 s49, s41, 0x14000
        s_add_u32 s49, s49, {WS_DBG}
        s_cmp_ge_u32 s41, 4
        s_cbranch_scc1 L_nodump
        v_lshlrev_b32 v8, 4, v0
        s_mov_b32 s50, 10
        L_dump:
        ds_read_b128 v[32:35], v8
        s_waitcnt lgkmcnt(0)
        buffer_store_dwordx4 v[32:35], v8, s[8:11], s49 offen
        s_waitcnt vmcnt(0)
        v_add_u32 v8, 8192, v8
        s_sub_u32 s50, s50, 1
        s_cmp_lg_u32 s50, 0
        s_cbranch_scc1 L_dump
        L_nodump:
        s_barrier
        """)
    a("s_cmp_ge_u32 s40, 4\ns_cbranch_scc1 L_c_noconv")
    A = lambda s: 32 + 4*s
    B = lambda u: 64 + 4*u
    C = lambda j: 96 + 4*j
    def ldAB(n):
        o = 128*(n & 1)
        a(f"ds_read2_b32 v[{A(n)}:{A(n)+1}], v{24+(n>>1)} offset0:{o} offset1:{o+1}")
        a(f"ds_read2_b32 v[{A(n)+2}:{A(n)+3}], v{24+(n>>1)} offset0:{o+2} offset1:{o+3}")
        a(f"ds_read_b128 v[{B(n)}:{B(n)+3}], v28 offset:{512*(7-n)}")
    for n in (7, 6, 5, 4): ldAB(n)
    a("s_waitcnt lgkmcnt(3)")
    for n in (0, 1, 2, 3): ldAB(n)
    for j in range(8):
        for r in range(4): a(f"v_mov_b32 v{C(j)+r}, 0")
    a("s_mov_b32 s49, 4\nL_c_conv:")
    for r in (24, 25, 26, 27, 28): a(f"v_add_u32 v{r}, 64, v{r}")
    def mm(s, u): a(f"v_mfma_f32_16x16x32_bf16 v[{C(s+u)}:{C(s+u)+3}], v[{A(s)}:{A(s)+3}], v[{B(u)}:{B(u)+3}], v[{C(s+u)}:{C(s+u)+3}]")
    for n in (7, 6, 5, 4):
        for i in range(8 - n):
            if i == 7 - n: a("s_waitcnt lgkmcnt(9)")
            mm(n, i); mm(i, n)
        ldAB(n)
    for n in (0, 1, 2, 3):
        mm(n, n)
        for i in range(n + 1, 4):
            mm(n, i); mm(i, n)
        if n == 0: a("s_waitcnt lgkmcnt(12)")
        ldAB(n)
    a("""
    s_sub_u32 s49, s49, 1
    s_cmp_lg_u32 s49, 0
    s_cbranch_scc1 L_c_conv
    s_waitcnt lgkmcnt(0)
    """)
    for j in (7, 0, 1, 2, 3, 4, 5, 6):
        a(f"v_cvt_pk_bf16_f32 v{32+2*j}, v{C(j)}, v{C(j)+1}\nv_cvt_pk_bf16_f32 v{33+2*j}, v{C(j)+2}, v{C(j)+3}")
        a(f"ds_write_b64 v29, v[{32+2*j}:{33+2*j}] offset:{576*j}")
    a("s_waitcnt lgkmcnt(0)\nL_c_noconv:\ns_barrier")
    stamp(9)
    for i, rg in enumerate((2, 6, 3, 7)):
        a(f"ds_read_b64 v[{32+2*i}:{33+2*i}], v30 offset:{rg*RS}")
    a("s_mov_b32 s49, 0x3f80\ns_mov_b32 s50, 0x3f800000")
    for hh in range(2):
        a(f"s_waitcnt lgkmcnt({2-2*hh})")
        for r in range(4):
            for ch in range(2):
                a(f"v_dot2c_f32_bf16 v{16+2*r+ch}, s{49+(r&1)}, v{32+4*hh+2*ch+(r>>1)}")
    for r in range(4):
        a(f"v_cvt_pk_bf16_f32 v{40+r}, v{16+2*r}, v{17+2*r}")
        a(f"buffer_store_dword v{40+r}, v6, s[12:15], s48 offen offset:{896*r}")
    stamp(10)
    a(f"""
    s_cmp_lg_u32 s40, 7
    s_cbranch_scc1 L_c_nofp
    v_mul_u32_u24 v8, 3584, v1
    s_lshl_b32 s51, s41, 4
    s_add_u32 s51, s51, {WS_FFN}
    v_mov_b32 v44, 0
    v_mov_b32 v45, 0
    s_mov_b32 s49, 0
    s_mov_b32 exec_hi, 0xffffff
    L_c_fpoll:
    buffer_load_dwordx4 v[44:47], v8, s[8:11], s51 offen sc1
    s_waitcnt vmcnt(0)
    v_cmp_ne_u32 vcc, s42, v47
    s_cbranch_vccz L_c_fpolled
    s_add_u32 s49, s49, 1
    s_cmp_ge_u32 s49, {SPIN_MAX}
    s_cbranch_scc1 L_c_fpolled
    s_mov_b64 exec, vcc
    s_sleep 2
    s_branch L_c_fpoll
    L_c_fpolled:
    s_mov_b64 exec, -1
    v_readfirstlane_b32 s52, v46
    """)
    for sh in (1, 2, 4, 8):
        for r in (44, 45):
            a(f"v_add_f32_dpp v{r}, v{r}, v{r} row_shr:{sh} row_mask:0xf bank_mask:0xf bound_ctrl:0")
    for r in (44, 45): a(f"v_add_f32_dpp v{r}, v{r}, v{r} row_bcast:15 row_mask:0xa bank_mask:0xf")
    for r in (44, 45): a(f"v_add_f32_dpp v{r}, v{r}, v{r} row_bcast:31 row_mask:0xc bank_mask:0xf")
    a(f"""
    v_mov_b32 v46, s52
    v_mov_b32 v8, {MISC}
    s_mov_b32 exec_lo, 0
    s_brev_b32 exec_hi, 1
    ds_write_b128 v8, v[44:47]
    s_cmp_lg_u32 s41, 0
    s_cbranch_scc1 L_c_noep
    v_mov_b32 v9, s42
    buffer_store_dword v9, off, s[8:11], 0
    L_c_noep:
    s_mov_b64 exec, -1
    s_waitcnt lgkmcnt(0)
    L_c_nofp:
    s_barrier
    v_mov_b32 v8, {MISC}
    ds_read_b128 v[44:47], v8
    s_waitcnt lgkmcnt(0)
    v_readfirstlane_b32 s52, v46
    v_lshrrev_b32 v9, 2, v46
    v_cmp_eq_u32 vcc, v9, v0
    s_and_saveexec_b64 s[60:61], vcc
    s_cbranch_execz L_c_end
    s_bitcmp1_b32 s52, 0
    s_cselect_b64 vcc, -1, 0
    v_cndmask_b32 v16, v16, v18, vcc
    v_cndmask_b32 v17, v17, v19, vcc
    v_cndmask_b32 v20, v20, v22, vcc
    v_cndmask_b32 v21, v21, v23, vcc
    s_bitcmp1_b32 s52, 1
    s_cselect_b64 vcc, -1, 0
    v_cndmask_b32 v16, v16, v20, vcc
    v_cndmask_b32 v17, v17, v21, vcc
    v_pk_add_f32 v[16:17], v[16:17], v[44:45]
    v_mul_u32_u24 v9, 896, v46
    v_cvt_pk_bf16_f32 v16, v16, v17
    buffer_store_dword v16, v9, s[12:15], s48 offen
    L_c_end:
    """)
    if stamps or probe:
        a("s_waitcnt vmcnt(0)")
        stamp(11)
    stamp_flush(13)
    probe_end("L_c_probe", None)
    a("L_exit:\ns_endpgm")
    F_XS, F_PART, F_MISC = 0, 1024, 5120
    role[0] = "f"
    a("""
    L_ffn:
    s_load_dwordx2 s[16:17], s[0:1], 72
    s_load_dwordx2 s[20:21], s[0:1], 80
    s_load_dwordx2 s[24:25], s[0:1], 88
    s_sub_u32 s41, s2, 224
    """)
    srd(16, 1605632); srd(20, 1605632); srd(24, 1605632)
    a("""
    v_and_b32 v3, 15, v1
    v_lshrrev_b32 v4, 4, v1
    v_lshrrev_b32 v5, 3, v3
    v_lshl_add_u32 v5, v5, 2, v4
    v_mul_u32_u24 v5, 28672, v5
    v_and_b32 v6, 7, v3
    v_lshl_add_u32 v5, v6, 4, v5
    s_mul_i32 s44, s40, 229376
    s_lshl_b32 s45, s41, 7
    s_add_u32 s44, s44, s45
    s_add_u32 s45, s44, 7168
    s_add_u32 s46, s44, 14336
    s_add_u32 s47, s44, 21504
    s_and_b32 s50, s40, 3
    s_lshr_b32 s51, s40, 2
    s_lshl_b32 s48, s50, 4
    v_add_u32 v7, s48, v3
    v_mul_u32_u24 v8, 7168, v4
    v_cmp_gt_u32 vcc, 56, v7
    v_lshl_add_u32 v8, v7, 4, v8
    v_mov_b32 v9, 0x7fffffff
    v_lshl_add_u32 v10, v7, 2, v4
    v_lshlrev_b32 v10, 4, v10
    v_cndmask_b32 v8, v9, v8, vcc
    v_cndmask_b32 v10, v9, v10, vcc
    s_lshl_b32 s52, s41, 1
    s_add_u32 s52, s52, s51
    s_mul_i32 s48, s52, 28672
    s_add_u32 s49, s48, 3584
    s_mul_i32 s52, s52, 3584
    """)
    a(f"s_add_u32 s52, s52, {WS_FFN}")
    a("s_waitcnt lgkmcnt(0)")
    stamp(1)
    a("s_load_dword s42, s[8:9], 0")
    G, U, D = 32, 64, 96
    for r in range(8):
        a(f"buffer_load_dwordx4 v[{D+4*r}:{D+4*r+3}], v8, s[24:27], s{48+(r>>2)} offen offset:{896*(r&3)}")
    a("s_cmp_lg_u32 s40, 7\ns_cbranch_scc1 L_f_gu\ns_waitcnt vmcnt(0)\ns_branch L_f_nogu\nL_f_gu:")
    for base, sr in ((G, 16), (U, 20)):
        for r in range(8):
            a(f"buffer_load_dwordx4 v[{base+4*r}:{base+4*r+3}], v5, s[{sr}:{sr+3}], s{44+(r>>1)} offen offset:{3584*(r&1)}")
    a("s_waitcnt vmcnt(16)\nL_f_nogu:")
    a("s_mov_b32 s54, 0x05040100\ns_mov_b32 s55, 0x07060302")
    def transp(b):
        p = lambda rp, d: (b + 8*rp + d, b + 8*rp + 4 + d)
        for i in range(4):
            x, y = p(i, i)
            a(f"v_perm_b32 v12, v{y}, v{x}, s54\nv_perm_b32 v{y}, v{y}, v{x}, s55\nv_mov_b32 v{x}, v12")
        for i in range(4):
            for j in range(i + 1, 4):
                x, y = p(i, j); u, w = p(j, i)
                a(f"""
                v_perm_b32 v12, v{y}, v{x}, s54
                v_perm_b32 v13, v{y}, v{x}, s55
                v_perm_b32 v{x}, v{w}, v{u}, s54
                v_perm_b32 v{y}, v{w}, v{u}, s55
                v_mov_b32 v{u}, v12
                v_mov_b32 v{w}, v13
                """)
    transp(D)
    a("s_cmp_eq_u32 s40, 7\ns_cbranch_scc1 L_f_router")
    a("s_waitcnt vmcnt(8)")
    transp(G)
    a("s_waitcnt vmcnt(0)")
    transp(U)
    a("s_waitcnt lgkmcnt(0)")
    next_tag()
    a("s_branch L_f_join")
    a(f"""
    L_f_router:
    v_lshlrev_b32 v14, 4, v1
    s_mov_b32 s44, {WS_KEY}
    s_mov_b32 s45, {WS_KEY+4096}
    s_waitcnt lgkmcnt(0)
    """)
    next_tag()
    a("s_mov_b32 s46, 0")
    stamp(2)
    a("L_f_kpoll:")
    for i in range(8):
        a(f"buffer_load_dwordx4 v[{32+4*i}:{35+4*i}], v14, s[8:11], s{44+(i>>2)} offen offset:{1024*(i&3)} sc1")
    a("v_mov_b32 v15, 0\nv_mov_b32 v16, 0")
    for i in range(8):
        a(f"s_waitcnt vmcnt({7-i})")
        a(f"v_bitop3_b32 v15, v{33+4*i}, s42, v15 bitop3:0xbe")
        a(f"v_max3_u32 v16, v{32+4*i}, v{34+4*i}, v16")
        a(f"v_bitop3_b32 v15, v{35+4*i}, s42, v15 bitop3:0xbe")
    a(f"""
    v_cmp_ne_u32 vcc, 0, v15
    s_cbranch_vccz L_f_kpolled
    s_add_u32 s46, s46, 1
    s_cmp_ge_u32 s46, {SPIN_MAX}
    s_cbranch_scc1 L_f_kpolled
    s_mov_b64 exec, vcc
    s_sleep 2
    s_branch L_f_kpoll
    L_f_kpolled:
    s_mov_b64 exec, -1
    """)
    stamp(3)
    for sh in (1, 2, 4, 8):
        a(f"v_max_u32_dpp v16, v16, v16 row_shr:{sh} row_mask:0xf bank_mask:0xf")
    a("v_max_u32_dpp v16, v16, v16 row_bcast:15 row_mask:0xa bank_mask:0xf")
    a("v_max_u32_dpp v16, v16, v16 row_bcast:31 row_mask:0xc bank_mask:0xf")
    a(f"""
    v_readlane_b32 s44, v16, 63
    s_and_b32 s45, s44, 0x7ff
    s_sub_u32 s45, 2047, s45
    s_mul_i32 s46, s45, 896
    s_lshr_b32 s47, s45, 2
    s_lshl_b32 s47, s47, 4
    s_bfe_u32 s56, s45, 0x10001
    s_lshl_b32 s56, s56, 13
    s_add_u32 s47, s47, s56
    s_add_u32 s47, s47, {WS_STAT}
    s_mov_b32 exec_hi, 0xffffff
    buffer_load_dwordx4 v[32:35], v14, s[4:7], s46 offen
    s_mov_b32 s46, 0
    L_f_spoll:
    buffer_load_dwordx4 v[36:39], off, s[8:11], s47 sc1
    s_ashr_i32 s56, s44, 31
    s_not_b32 s56, s56
    s_or_b32 s56, s56, 0x80000000
    s_xor_b32 s56, s56, s44
    s_and_b32 s56, s56, 0xffff0000
    v_mov_b32 v17, 0xbfb8aa3b
    v_mul_f32 v17, s56, v17
    v_exp_f32 v17, v17
    v_add_f32 v17, 1.0, v17
    v_rcp_f32 v17, v17
    v_mov_b32 v16, s45
    s_add_u32 s46, s46, 1
    s_cmp_ge_u32 s46, {SPIN_MAX}
    s_cbranch_scc1 L_f_spolled
    s_waitcnt vmcnt(0)
    v_cmp_ne_u32 vcc, s42, v39
    s_cbranch_vccnz L_f_spoll
    L_f_spolled:
    s_waitcnt vmcnt(0)
    """)
    stamp(4)
    a(f"""
    s_bitcmp1_b32 s45, 0
    s_cselect_b64 vcc, -1, 0
    v_lshlrev_b32 v40, 16, v38
    v_and_b32 v41, 0xffff0000, v38
    v_cndmask_b32 v36, v36, v37, vcc
    v_cndmask_b32 v37, v40, v41, vcc
    """)
    for d in range(4):
        a(f"v_lshlrev_b32 v{40+2*d}, 16, v{32+d}\nv_and_b32 v{41+2*d}, 0xffff0000, v{32+d}")
    for d in range(4):
        a(f"v_pk_add_f32 v[{40+2*d}:{41+2*d}], v[{40+2*d}:{41+2*d}], v[36:37] op_sel:[0,1] op_sel_hi:[1,1] neg_lo:[0,1] neg_hi:[0,1]")
    for d in range(4):
        a(f"v_pk_mul_f32 v[{40+2*d}:{41+2*d}], v[{40+2*d}:{41+2*d}], v[36:37] op_sel:[0,0] op_sel_hi:[1,0]")
    for d in range(4):
        a(f"v_cvt_pk_bf16_f32 v{32+d}, v{40+2*d}, v{41+2*d}")
    a(f"""
    ds_write_b128 v14, v[32:35] offset:{F_XS}
    v_mov_b32 v15, {F_MISC}
    ds_write_b64 v15, v[16:17]
    s_mov_b64 exec, -1
    L_f_join:
    """)
    a(f"""
    v_and_b32 v14, 1, v3
    v_lshlrev_b32 v14, 6, v14
    v_lshl_add_u32 v14, v4, 4, v14
    s_lshl_b32 s44, s40, 7
    v_add_u32 v14, s44, v14
    v_lshl_add_u32 v15, v6, 2, v4
    v_lshlrev_b32 v15, 4, v15
    s_lshl_b32 s44, s40, 9
    v_add_u32 v15, s44, v15
    v_lshl_add_u32 v16, v4, 3, v6
    v_lshlrev_b32 v16, 3, v16
    s_lshl_b32 s44, s51, 8
    v_add_u32 v16, s44, v16
    v_mov_b32 v17, {F_MISC}
    s_waitcnt lgkmcnt(0)
    s_barrier
    """)
    stamp(5)
    a(f"""
    ds_read_b64 v[30:31], v17
    s_cmp_eq_u32 s40, 7
    s_cbranch_scc1 L_f_nogu2
    ds_read_b128 v[20:23], v14 offset:{F_XS}
    s_waitcnt lgkmcnt(0)
    """)
    def dreg(n): return 24 if n == 0 else 32 + 4*(n-1)
    def red(n):
        mtx, c = n >> 3, n & 7
        a(f"v_add_f32_dpp v{4+2*(c&1)+mtx}, v{dreg(n)+1}, v{dreg(n)} row_ror:8 row_mask:{hex(1<<(c>>1))} bank_mask:0xf")
    for n in range(16):
        a(f"v_mfma_f32_16x16x32_bf16 v[{dreg(n)}:{dreg(n)+3}], v[20:23], v[{32+4*n}:{35+4*n}], 0")
        if n >= 8: red(n - 8)
    for n in range(8, 16): red(n)
    a(f"""
    s_mov_b32 exec_lo, 0x00ff00ff
    s_mov_b32 exec_hi, 0x00ff00ff
    ds_write_b128 v15, v[4:7] offset:{F_PART}
    s_mov_b64 exec, -1
    L_f_nogu2:
    s_waitcnt lgkmcnt(0)
    s_barrier
    """)
    stamp(6)
    for w in range(7):
        a(f"ds_read_b64 v[{32+2*w}:{33+2*w}], v16 offset:{F_PART+512*w}")
    a("""
    s_waitcnt lgkmcnt(5)
    v_pk_add_f32 v[32:33], v[32:33], v[34:35]
    s_waitcnt lgkmcnt(3)
    v_pk_add_f32 v[36:37], v[36:37], v[38:39]
    s_waitcnt lgkmcnt(1)
    v_pk_add_f32 v[40:41], v[40:41], v[42:43]
    v_pk_add_f32 v[32:33], v[32:33], v[36:37]
    s_waitcnt lgkmcnt(0)
    v_pk_add_f32 v[40:41], v[40:41], v[44:45]
    v_pk_add_f32 v[32:33], v[32:33], v[40:41]
    v_mul_f32 v34, 0xbfb8aa3b, v32
    v_exp_f32 v34, v34
    v_mul_f32 v32, v32, v33
    v_add_f32 v34, 1.0, v34
    v_rcp_f32 v34, v34
    v_mov_b32 v6, v30
    v_mul_f32 v32, v32, v34
    v_mov_b32 v7, s42
    v_mov_b32_dpp v33, v32 quad_perm:[1,1,3,3] row_mask:0xf bank_mask:0xf
    v_cvt_pk_bf16_f32 v32, v32, v33
    """)
    for q in range(4):
        a(f"v_mov_b32_dpp v{20+q}, v32 row_newbcast:{2*q} row_mask:0xf bank_mask:0xf")
    for c in range(8):
        a(f"v_mfma_f32_16x16x32_bf16 v[{40+4*c}:{43+4*c}], v[20:23], v[{D+4*c}:{D+4*c+3}], 0")
    for c in range(8):
        a(f"v_mul_f32_dpp v{4+(c&1)}, v{40+4*c}, v31 quad_perm:[0,1,2,3] row_mask:{hex(1<<(c>>1))} bank_mask:0xf")
    a("buffer_store_dwordx4 v[4:7], v10, s[8:11], s52 offen sc1")
    stamp(7)
    if stamps or probe:
        a("s_waitcnt vmcnt(0)")
        stamp(8)
    stamp_flush(9)
    probe_end("L_f_probe", None)
    a("s_endpgm")
    npad = a.pad(verbose=bool(os.environ.get("PADV")))
    hdr = open(os.path.join(os.path.dirname(__file__), "header.txt")).read()
    src = hdr + f"""; @launch grid=(252,1,1) block=(512,1,1) lds={LDS_BYTES}
.amdgcn_target "amdgcn-amd-amdhsa--gfx950"
.text
.globl {KN}
.p2align 8
.type {KN},@function
""" + a.text() + f""".section .rodata,"a"
.p2align 6
.amdhsa_kernel {KN}
  .amdhsa_next_free_vgpr 128
  .amdhsa_next_free_sgpr {96 if (stamps or probe) else 64}
  .amdhsa_accum_offset 128
  .amdhsa_group_segment_fixed_size 0
  .amdhsa_kernarg_size 120
  .amdhsa_user_sgpr_count 2
  .amdhsa_user_sgpr_kernarg_segment_ptr 1
  .amdhsa_system_sgpr_workgroup_id_x 1
.end_amdhsa_kernel
"""
    return src

if __name__ == "__main__":
    out = sys.argv[1]
    opts = sys.argv[2:]
    probe = None
    for o in opts:
        if o.startswith("probe="):
            r, k, lo, hi = o[6:].split(",")
            probe = (r, int(k), (int(lo), int(hi)))
    open(out, "w").write(gen(stamps="stamps" in opts, dump="lds" if "lds" in opts else None, probe=probe))
```

```python
import sys, os
sys.path.insert(0, os.path.dirname(__file__))
from asmlib import Asm
NAME = "parallel_sum__ssm_conv_s4d__moe_arch_mod__prompt"
KN = NAME + "_kernel"

WS_STAT = 0x1000
WS_KEY  = 0x5000
WS_FFN  = 0x8000
WS_XIN  = 0x40000
WS_DBG  = 0x800000
WS_SIZE = 0x1000000
RS   = 8704
XREV = 8*RS
XCH  = 4576
MISC = XREV + 2*XCH
LDS_BYTES = MISC + 64
KOFF = 3072
LOG2E = 0x3fb8aa3b
SPIN_MAX = 200000

def gen(stamps=False, dump=None, probe=None):
    a = Asm()
    nst = [0]
    role = ["c"]
    def stamp(k):
        if stamps or (probe and (k == 0 or (probe[0] == role[0] and probe[1] == k))): a(f"s_memrealtime s[{64+2*k}:{65+2*k}]")
    def probe_end(lbl, waves):
        if not probe: return
        a("s_waitcnt vmcnt(0) lgkmcnt(0)")
        a("s_add_u32 s90, s64, 3000")
        if probe[0] == "x":
            a(f"s_getreg_b32 s91, hwreg(HW_REG_XCC_ID)\ns_and_b32 s91, s91, 15\ns_cmp_eq_u32 s91, {probe[1]}\ns_cbranch_scc1 {lbl}\ns_mov_b32 s90, s64")
        if probe[0] == role[0]:
            lo, hi = probe[2]
            a(f"s_cmp_lt_u32 s40, {lo}\ns_cbranch_scc1 {lbl}\ns_cmp_gt_u32 s40, {hi}\ns_cbranch_scc1 {lbl}")
            a(f"s_sub_u32 s91, s{64+2*probe[1]}, s64\ns_lshl_b32 s91, s91, 2\ns_add_u32 s90, s90, s91")
        if probe[0] == "w": a("s_mov_b64 exec, -1\nbuffer_wbl2 sc1\ns_waitcnt vmcnt(0)")
        a(f"{lbl}:\ns_memrealtime s[92:93]\ns_waitcnt lgkmcnt(0)\ns_sub_u32 s92, s92, s90\ns_cmp_lt_i32 s92, 0\ns_cbranch_scc1 {lbl}")
        if probe[0] in "dw" and probe[1] > 0:
            a("s_mov_b64 exec, -1\nv_lshlrev_b32 v1, 4, v0\ns_lshl_b32 s91, s2, 15\ns_add_u32 s91, s91, 0x400000")
            for i in range(probe[1]):
                a(f"buffer_store_dwordx4 v[16:19], v1, s[8:11], s91 offen {'sc1' if probe[2][0] else ''}\ns_add_u32 s91, s91, 8192")
    def stamp_flush(n):
        if not stamps: return
        a("s_waitcnt lgkmcnt(0)")
        a("s_lshl_b32 s62, s2, 3\ns_add_u32 s62, s62, s40\ns_lshl_b32 s62, s62, 6")
        a(f"s_add_u32 s62, s62, {WS_DBG}")
        a("s_mov_b64 exec, 1")
        a("v_mov_b32 v1, 0")
        for k in range(n):
            a(f"v_mov_b32 v2, s{64+2*k}\nbuffer_store_dword v2, v1, s[8:11], s62 offen offset:{4*k}")
    def srd(base, size):
        a(f"s_mov_b32 s{base+2}, {size}\ns_mov_b32 s{base+3}, 0x20000")
    def cmul(d, x, y, t=None):
        t = d if t is None else t
        a(f"v_pk_mul_f32 v[{t}:{t+1}], v[{x}:{x+1}], v[{y}:{y+1}] op_sel_hi:[0,1]")
        a(f"v_pk_fma_f32 v[{d}:{d+1}], v[{x}:{x+1}], v[{y}:{y+1}], v[{t}:{t+1}] op_sel:[1,1,0] op_sel_hi:[1,0,1] neg_lo:[0,1,0]")
    def next_tag():
        a("s_mul_i32 s42, s42, 0x9e3779b1\ns_add_u32 s42, s42, 0x7f4a7c15")

    a(f"{KN}:")
    stamp(0)
    a(f"""
    s_cmp_ge_u32 s2, 252
    s_cbranch_scc1 L_exit
    s_load_dwordx2 s[4:5], s[0:1], 0
    s_load_dwordx2 s[8:9], s[0:1], 112
    v_lshrrev_b32 v2, 6, v0
    v_and_b32 v1, 63, v0
    s_and_b32 s43, s2, 7
    v_readfirstlane_b32 s40, v2
    s_lshr_b32 s44, s2, 3
    """)
    srd(4, 1835008); srd(8, WS_SIZE)
    a("""
    s_cmp_ge_u32 s44, 28
    s_cbranch_scc1 L_ffn
    """)
    a("""
    s_load_dwordx2 s[32:33], s[0:1], 64
    s_load_dwordx2 s[16:17], s[0:1], 8
    s_load_dwordx2 s[20:21], s[0:1], 16
    s_load_dwordx2 s[24:25], s[0:1], 24
    s_load_dwordx2 s[28:29], s[0:1], 32
    s_load_dwordx4 s[36:39], s[0:1], 40
    s_load_dwordx2 s[12:13], s[0:1], 96
    s_mul_i32 s41, s43, 28
    s_add_u32 s41, s41, s44
    """)
    srd(32, 896); srd(16, 229376); srd(20, 229376); srd(24, 229376); srd(28, 229376); srd(12, 1835008)
    a("""
    s_mul_i32 s45, s40, 224
    s_add_u32 s45, s45, s41
    s_mul_i32 s46, s45, 1792
    s_lshl_b32 s47, s41, 10
    s_lshl_b32 s48, s41, 2
    """)
    a("""
    v_and_b32 v3, 31, v1
    v_lshrrev_b32 v5, 5, v1
    v_cmp_gt_u32 vcc, 28, v3
    v_lshlrev_b32 v3, 5, v3
    v_mul_u32_u24 v4, 896, v5
    v_add_u32 v4, v4, v3
    v_mov_b32 v6, 0x7fffffff
    v_cndmask_b32 v4, v6, v4, vcc
    v_lshlrev_b32 v6, 1, v0
    v_mov_b32 v16, 0
    v_mov_b32 v17, 0
    v_mov_b32 v18, 0
    v_mov_b32 v19, 0
    """)
    a("""
    v_and_b32 v7, 3, v1
    v_bfe_u32 v8, v1, 4, 1
    v_lshl_add_u32 v7, v8, 2, v7
    v_bfe_u32 v8, v1, 2, 2
    v_lshl_add_u32 v8, v5, 2, v8
    v_and_b32 v9, 3, v2
    v_lshl_add_u32 v8, v9, 3, v8
    v_mul_u32_u24 v9, 3584, v7
    v_lshl_add_u32 v9, v8, 2, v9
    v_mul_u32_u24 v10, 12288, v8
    v_lshl_add_u32 v10, v7, 4, v10
    s_and_b32 s49, s41, 31
    s_lshr_b32 s50, s41, 5
    s_mul_i32 s51, s49, 57344
    s_lshl_b32 s52, s50, 7
    s_add_u32 s51, s51, s52
    s_add_u32 s52, s51, 28672
    s_mul_i32 s53, s50, 393216
    s_mul_i32 s49, s49, 384
    s_add_u32 s53, s53, s49
    """)
    a(f"s_add_u32 s53, s53, {WS_XIN}")
    stamp(12)
    a("s_waitcnt lgkmcnt(0)")
    stamp(1)
    a("""
    s_load_dword s42, s[8:9], 0
    s_load_dword s54, s[36:37], s48
    s_load_dword s55, s[38:39], s48
    s_cmp_ge_u32 s45, 1024
    s_cbranch_scc1 L_c_nost0
    buffer_load_dwordx4 v[32:35], v4, s[4:7], s46 offen
    buffer_load_dwordx4 v[36:39], v4, s[4:7], s46 offen offset:16
    buffer_load_dwordx4 v[40:43], v3, s[32:35], 0 offen
    buffer_load_dwordx4 v[44:47], v3, s[32:35], 0 offen offset:16
    L_c_nost0:
    buffer_load_short_d16_hi v16, v6, s[16:19], s47 offen
    buffer_load_short_d16_hi v17, v6, s[20:23], s47 offen
    buffer_load_short_d16_hi v18, v6, s[24:27], s47 offen
    buffer_load_short_d16_hi v19, v6, s[28:31], s47 offen
    s_cmp_lt_u32 s40, 4
    s_cbranch_scc1 L_c_notile0
    """)
    for k, r in enumerate([64, 65, 66, 72]):
        a(f"buffer_load_dword v{r}, v9, s[4:7], s51 offen offset:{k*896}")
    for k, r in enumerate([68, 69, 70, 73]):
        a(f"buffer_load_dword v{r}, v9, s[4:7], s52 offen offset:{k*896}")
    a("L_c_notile0:")
    O = {0:0, 8:4, 1:9*128, 4:10*128, 2:14*128, 6:16*128, 3:18*128, 5:19*128, 7:20*128}
    GA = 20
    a(f"""
    v_and_b32 v11, 255, v0
    v_lshrrev_b32 v12, 8, v0
    v_mul_u32_u24 v12, {4*RS}, v12
    v_lshl_add_u32 v{GA+1}, v11, 2, v12
    v_lshl_add_u32 v29, v11, 4, v12
    v_cmp_gt_u32 s[56:57], 32, v11
    v_cmp_gt_u32 s[58:59], 64, v11
    v_cmp_gt_u32 s[60:61], 33, v11
    v_cmp_gt_u32 vcc, 0x80, v11
    v_add_u32 v13, 4, v{GA+1}
    v_add_u32 v14, {O[4]}, v{GA+1}
    v_and_b32 v15, 1, v11
    v_lshl_add_u32 v15, v15, 2, v{GA+1}
    v_cndmask_b32 v{GA+5}, v15, v14, vcc
    v_cndmask_b32 v15, v{GA+1}, v14, vcc
    v_cndmask_b32 v14, v13, v14, vcc
    v_add_u32 v12, {O[1]}, v{GA+1}
    v_cndmask_b32 v{GA+2}, v{GA+1}, v12, s[56:57]
    v_add_u32 v12, {O[2]}, v{GA+1}
    v_cndmask_b32 v{GA+3}, v{GA+1}, v12, s[58:59]
    v_add_u32 v12, {O[3]}, v{GA+1}
    v_cndmask_b32 v{GA+4}, v15, v12, s[56:57]
    v_add_u32 v12, {O[5]}, v{GA+1}
    v_cndmask_b32 v{GA+6}, v14, v12, s[56:57]
    v_add_u32 v12, {O[6]}, v{GA+1}
    v_cndmask_b32 v{GA+7}, v13, v12, s[58:59]
    v_add_u32 v12, {O[7]}, v{GA+1}
    v_cndmask_b32 v{GA+8}, v13, v12, s[56:57]
    v_add_u32 v12, {O[7]-4}, v{GA+1}
    v_cndmask_b32 v{GA}, v{GA+1}, v12, s[60:61]
    v_cmp_eq_u32 s[56:57], 0, v11
    v_cmp_gt_u32 s[58:59], 2, v11
    """)
    a(f"""
    v_mov_b32 v48, 0
    v_mov_b32 v49, 0
    v_mov_b32 v50, 0
    v_mov_b32 v51, 0
    v_mul_u32_u24 v12, {XCH}, v2
    v_lshl_add_u32 v12, v1, 4, v12
    v_add_u32 v12, {XREV+4096}, v12
    v_cmp_gt_u32 vcc, 30, v1
    s_cmp_ge_u32 s40, 2
    s_cbranch_scc1 L_c_nopad
    s_and_saveexec_b64 s[60:61], vcc
    ds_write_b128 v12, v[48:51]
    s_mov_b64 exec, s[60:61]
    L_c_nopad:
    s_mul_i32 s49, s40, {RS}
    s_mov_b32 m0, s49
    v_and_b32 v30, 31, v1
    v_mul_u32_u24 v30, 272, v30
    v_lshl_add_u32 v30, v5, 4, v30
    v_add_u32 v30, s49, v30
    """)
    a("s_waitcnt lgkmcnt(0)")
    next_tag()
    a("s_barrier")
    stamp(2)
    a("""
    s_cmp_ge_u32 s45, 1024
    s_cbranch_scc1 L_c_nost1
    s_cmp_lt_u32 s40, 4
    s_cbranch_scc1 L_c_w4
    s_waitcnt vmcnt(12)
    s_branch L_c_w4j
    L_c_w4:
    s_waitcnt vmcnt(4)
    L_c_w4j:
    s_mov_b32 s49, 0x3f803f80
    """)
    stamp(3)
    for i in range(8):
        a(f"""
        v_dot2c_f32_bf16 v48, s49, v{32+i}
        v_dot2c_f32_bf16 v49, v{32+i}, v{32+i}
        v_dot2c_f32_bf16 v50, v{32+i}, v{40+i}
        v_dot2c_f32_bf16 v51, s49, v{40+i}
        """)
    for sh in (1, 2, 4, 8):
        for r in (48, 49, 50, 51):
            a(f"v_add_f32_dpp v{r}, v{r}, v{r} row_shr:{sh} row_mask:0xf bank_mask:0xf bound_ctrl:0")
    for r in (48, 49, 50, 51):
        a(f"v_add_f32_dpp v{r}, v{r}, v{r} row_bcast:15 row_mask:0xa bank_mask:0xf")
    a(f"""
    v_mul_f32 v48, 0x3b124925, v48
    v_mul_f32 v49, 0x3b124925, v49
    v_fma_f32 v49, -v48, v48, v49
    v_max_f32 v49, 0, v49
    v_cvt_pk_bf16_f32 v52, v49, v48
    v_lshlrev_b32 v49, 16, v52
    v_add_f32 v49, 0x3727c5ac, v49
    v_cvt_pk_bf16_f32 v49, v49, v49
    v_lshlrev_b32 v49, 16, v49
    v_sqrt_f32 v49, v49
    v_and_b32 v54, 0xffff0000, v52
    v_cvt_pk_bf16_f32 v49, v49, v49
    v_lshlrev_b32 v49, 16, v49
    v_rcp_f32 v53, v49
    v_fma_f32 v50, -v54, v51, v50
    v_mov_b32 v55, s42
    v_mul_f32 v50, v50, v53
    v_mov_b32_dpp v52, v53 row_bcast:31 row_mask:0xc bank_mask:0xf
    v_mov_b32_dpp v48, v54 row_bcast:31 row_mask:0xc bank_mask:0xf
    v_cvt_pk_bf16_f32 v50, v50, v50
    v_lshrrev_b32 v48, 16, v48
    v_ashrrev_i32 v51, 31, v50
    v_or_b32 v54, v54, v48
    v_or_b32 v51, 0x80000000, v51
    s_lshl_b32 s49, s45, 1
    s_sub_u32 s49, 2047, s49
    v_xor_b32 v50, v50, v51
    v_sub_u32 v51, s49, v5
    s_mov_b32 s49, 0xffff0000
    v_and_or_b32 v56, v50, s49, v51
    v_mov_b32 v57, s42
    s_and_b32 s49, s45, 1
    s_lshl_b32 s49, s49, 13
    v_max_u32_dpp v56, v56, v56 row_bcast:31 row_mask:0xc bank_mask:0xf
    s_lshr_b32 s50, s45, 1
    s_lshl_b32 s50, s50, 4
    s_add_u32 s49, s49, s50
    s_add_u32 s49, s49, {WS_STAT}
    s_lshl_b32 s50, s45, 3
    s_add_u32 s50, s50, {WS_KEY}
    s_mov_b32 exec_lo, 0
    s_brev_b32 exec_hi, 1
    buffer_store_dwordx4 v[52:55], off, s[8:11], s49 sc1
    buffer_store_dwordx2 v[56:57], off, s[8:11], s50 sc1
    s_mov_b64 exec, -1
    s_waitcnt vmcnt(2)
    s_branch L_c_st1j
    L_c_nost1:
    s_waitcnt vmcnt(0)
    L_c_st1j:
    s_cmp_lt_u32 s40, 4
    s_cbranch_scc1 L_c_notile1
    v_mov_b32 v67, s42
    v_mov_b32 v71, s42
    v_mov_b32 v75, s42
    buffer_store_dwordx4 v[64:67], v10, s[8:11], s53 offen sc1
    buffer_store_dwordx4 v[68:71], v10, s[8:11], s53 offen offset:128 sc1
    buffer_store_dwordx4 v[72:75], v10, s[8:11], s53 offen offset:256 sc1
    s_branch L_c_tile1j
    L_c_notile1:
    s_lshl_b32 s54, s54, 16
    L_c_tile1j:
    """)
    stamp(4)
    a(f"""
    s_and_b32 s54, s54, 0xffff0000
    v_mov_b32 v3, {LOG2E}
    v_mul_f32 v4, s54, v3
    v_mul_f32 v16, v16, v3
    v_exp_f32 v4, v4
    v_exp_f32 v16, v16
    v_cvt_pk_bf16_f32 v4, v4, v16
    v_and_b32 v16, 0xffff0000, v4
    v_lshlrev_b32 v4, 16, v4
    v_mul_f32 v16, v16, v4
    v_mul_f32 v17, v17, v4
    v_add_f32 v4, v4, v4
    v_mul_f32 v16, 0xbfb8aa3b, v16
    v_mul_f32 v17, 0.15915494, v17
    v_mul_f32 v18, v18, v4
    v_mul_f32 v19, -v19, v4
    """)
    Z1, W8, ZZ = 32, 34, 36
    def cis(d, k):
        if k == 1:
            a(f"v_fract_f32 v7, v17\nv_exp_f32 v6, v16")
        else:
            a(f"v_mul_f32 v7, {k}, v17\nv_mul_f32 v6, {k}, v16\nv_fract_f32 v7, v7\nv_exp_f32 v6, v6")
        a(f"v_cos_f32 v{d}, v7\nv_sin_f32 v{d+1}, v7")
        a(f"v_pk_mul_f32 v[{d}:{d+1}], v[{d}:{d+1}], v[6:7] op_sel_hi:[1,0]")
    cis(Z1, 1); cis(ZZ, "0x43800000"); cis(W8, "0x41000000")
    slot_of = {0:0, 256:1, 512:2, 768:3, 1024:4, 1280:5, 1536:6, 1792:7, 2048:8, 1:9, 4:10, 260:11, 516:12, 772:13,
               2:14, 258:15, 6:16, 262:17, 3:18, 5:19, 7:20}
    tcount = [0]
    def putA(h, r):
        s = slot_of[h]; m, e = s >> 1, s & 1
        row = 8*(m >> 2) + 4*e + (m & 3)
        t = 8 + (tcount[0] & 3); tcount[0] += 1
        if r is None: a(f"v_mov_b32 v{t}, 0x3f80")
        else: a(f"v_cvt_pk_bf16_f32 v{t}, v{r}, v{r+1}")
        a(f"ds_write_addtid_b32 v{t} offset:{row*272}")
    z = {1: Z1, 256: ZZ}
    putA(0, None); putA(1, Z1); putA(256, ZZ)
    nxt = [38]
    def prod(h, p, q, keep=True):
        if keep:
            d = nxt[0]; nxt[0] += 2
        else: d = 60 + 2*(tcount[0] & 1)
        cmul(d, z[p], z[q]); z[h] = d; putA(h, d)
    prod(2, 1, 1); prod(512, 256, 256); prod(3, 2, 1); prod(768, 512, 256); prod(4, 2, 2); prod(1024, 512, 512)
    prod(6, 4, 2); prod(5, 4, 1, False); prod(7, 4, 3, False)
    for h, p, q in [(258,256,2), (260,256,4), (262,256,6), (516,512,4), (772,768,4), (1280,1024,256), (1536,1024,512), (1792,1024,768), (2048,1024,1024)]:
        prod(h, p, q, False)
    a(f"v_xor_b32 v{W8+1}, 0x80000000, v{W8+1}")
    a(f"v_mov_b32 v14, v{W8}\nv_mov_b32 v15, v{W8+1}")
    for ks in range(8):
        a(f"ds_read_b128 v[{64+4*ks}:{67+4*ks}], v30 offset:{32*ks}")
    a("s_mov_b32 s49, 2\nL_c_bchain:")
    for j in range(16):
        t = 8 + (j & 3)
        a(f"v_cvt_pk_bf16_f32 v{t}, v18, v19")
        cmul(18, 18, 14, 12)
        a(f"ds_write_addtid_b32 v{t} offset:{j*272}")
    a(f"""
    s_add_u32 m0, m0, {16*272}
    s_sub_u32 s49, s49, 1
    s_cmp_lg_u32 s49, 0
    s_cbranch_scc1 L_c_bchain
    s_sub_u32 m0, m0, {32*272}
    """)
    for ks in range(8):
        a(f"ds_read_b128 v[{32+4*ks}:{35+4*ks}], v30 offset:{32*ks}")
    a(f"""
    v_lshrrev_b32 v3, 4, v0
    v_mul_u32_u24 v3, 384, v3
    v_and_b32 v4, 7, v0
    v_lshl_add_u32 v4, v4, 4, v3
    v_and_b32 v5, 15, v0
    v_lshl_add_u32 v3, v5, 4, v3
    v_lshlrev_b32 v5, 4, v0
    s_mul_i32 s51, s41, 12288
    s_add_u32 s51, s51, {WS_XIN}
    s_mov_b32 s52, {WS_STAT}
    s_mov_b32 s53, {WS_STAT+8192}
    """)
    for ks in range(8):
        a(f"s_waitcnt lgkmcnt({7-ks})")
        c = "0" if ks == 0 else "v[96:111]"
        a(f"v_mfma_f32_32x32x16_bf16 v[96:111], v[{64+4*ks}:{67+4*ks}], v[{32+4*ks}:{35+4*ks}], {c}")
    def poll_loads():
        a("""
        buffer_load_dwordx4 v[112:115], v3, s[8:11], s51 offen sc1
        buffer_load_dwordx4 v[116:119], v4, s[8:11], s51 offen offset:256 sc1
        buffer_load_dwordx4 v[120:123], v5, s[8:11], s52 offen sc1
        buffer_load_dwordx4 v[124:127], v5, s[8:11], s53 offen sc1
        """)
    poll_loads()
    for m in range(11):
        a(f"ds_write_addtid_b32 v{96+m} offset:{m*256}")
    a("s_waitcnt lgkmcnt(0)\ns_barrier")
    stamp(5)
    for i in range(9):
        a(f"ds_read2st64_b32 v[{32+4*i}:{33+4*i}], v{GA+i} offset0:0 offset1:34")
        a(f"ds_read2st64_b32 v[{34+4*i}:{35+4*i}], v{GA+i} offset0:68 offset1:102")
        if i == 6: a("s_waitcnt lgkmcnt(10)")
    a("v_mov_b32 v76, 0\nv_mov_b32 v77, 0\nv_mov_b32 v78, 0\nv_mov_b32 v79, 0")
    for i in range(9):
        a(f"s_waitcnt lgkmcnt({min(15,16-2*i)})")
        a(f"v_pk_add_f32 v[{32+4*i}:{33+4*i}], v[{32+4*i}:{33+4*i}], v[{34+4*i}:{35+4*i}]")
        a(f"v_add_f32 v{32+4*i}, v{32+4*i}, v{33+4*i}")
    a("v_cndmask_b32 v32, v32, v76, s[56:57]")
    k = lambda i: 36 + 4*i
    for d in range(4):
        a(f"v_cvt_pk_bf16_f32 v{68+d}, v{k(2*d)}, v{k(2*d+1)}")
    a(f"ds_write_b128 v29, v[68:71] offset:{KOFF+32}")
    for d in range(4):
        a(f"v_cvt_pk_bf16_f32 v{72+d}, v{k(2*d-1)}, v{k(2*d)}")
    a(f"ds_write_b128 v29, v[72:75] offset:{RS+KOFF+64+32}")
    a(f"""
    s_and_saveexec_b64 s[60:61], s[58:59]
    s_cbranch_execz L_c_nokpad
    ds_write_b128 v29, v[76:79] offset:{KOFF}
    ds_write_b128 v29, v[76:79] offset:{RS+KOFF+64}
    L_c_nokpad:
    s_mov_b64 exec, s[60:61]
    """)
    a(f"""
    s_lshl_b32 s49, s55, 16
    s_and_b32 s50, s55, 0xffff0000
    v_mov_b32 v14, 1.0
    v_add_f32 v15, s50, v14
    v_add_f32 v14, s49, v14
    v_and_b32 v7, 8, v0
    v_cmp_ne_u32 s[56:57], 0, v7
    v_lshlrev_b32 v7, 3, v0
    v_sub_u32 v7, {XREV+4088}, v7
    v_mul_u32_u24 v6, 3584, v0
    s_mov_b32 s49, 0
    """)
    stamp(6)
    a(f"""
    L_c_poll:
    s_waitcnt vmcnt(0)
    v_xor_b32 v8, s42, v115
    v_bitop3_b32 v8, v119, s42, v8 bitop3:0xbe
    v_bitop3_b32 v8, v123, s42, v8 bitop3:0xbe
    v_bitop3_b32 v8, v127, s42, v8 bitop3:0xbe
    v_cmp_ne_u32 vcc, 0, v8
    s_cbranch_vccz L_c_polled
    s_add_u32 s49, s49, 1
    s_cmp_ge_u32 s49, {SPIN_MAX}
    s_cbranch_scc1 L_c_polled
    s_mov_b64 exec, vcc
    s_sleep 2
    """)
    poll_loads()
    a("""
    s_branch L_c_poll
    L_c_polled:
    s_mov_b64 exec, -1
    """)
    stamp(7)
    a("v_cndmask_b32 v115, v116, v117, s[56:57]")
    for r in range(4):
        a(f"v_lshlrev_b32 v{16+2*r}, 16, v{112+r}\nv_and_b32 v{17+2*r}, 0xffff0000, v{112+r}")
    a("""
    v_lshlrev_b32 v8, 16, v122
    v_and_b32 v9, 0xffff0000, v122
    v_lshlrev_b32 v10, 16, v126
    v_and_b32 v11, 0xffff0000, v126
    """)
    for r in range(4):
        e = r & 1; mm = 8 + 2*(r >> 1)
        a(f"v_pk_add_f32 v[{32+2*r}:{33+2*r}], v[{16+2*r}:{17+2*r}], v[{mm}:{mm+1}] op_sel:[0,{e}] op_sel_hi:[1,{e}] neg_lo:[0,1] neg_hi:[0,1]")
    for r in range(4):
        e = r & 1; rs = 120 + 4*(r >> 1)
        a(f"v_pk_mul_f32 v[{32+2*r}:{33+2*r}], v[{32+2*r}:{33+2*r}], v[{rs}:{rs+1}] op_sel:[0,{e}] op_sel_hi:[1,{e}]")
    a(f"""
    v_cvt_pk_bf16_f32 v40, v38, v36
    v_cvt_pk_bf16_f32 v41, v34, v32
    v_cvt_pk_bf16_f32 v42, v39, v37
    v_cvt_pk_bf16_f32 v43, v35, v33
    ds_write_b64 v7, v[40:41]
    ds_write_b64 v7, v[42:43] offset:{XCH}
    """)
    for r in range(4):
        a(f"v_pk_fma_f32 v[{16+2*r}:{17+2*r}], v[{32+2*r}:{33+2*r}], v[14:15], v[{16+2*r}:{17+2*r}]")
    a(f"""
    v_and_b32 v8, 15, v1
    v_lshrrev_b32 v9, 4, v1
    s_lshr_b32 s49, s40, 1
    s_and_b32 s50, s40, 1
    s_mul_i32 s51, s49, {4*RS}
    s_lshl_b32 s52, s50, 8
    s_add_u32 s51, s51, s52
    s_add_u32 s51, s51, {KOFF+4+RS+64}
    v_and_b32 v10, 1, v8
    v_mul_u32_u24 v10, {RS+64}, v10
    v_sub_u32 v10, s51, v10
    v_lshrrev_b32 v11, 1, v8
    v_lshl_add_u32 v10, v11, 2, v10
    v_lshl_add_u32 v24, v9, 4, v10
    v_add_u32 v25, 1024, v24
    v_add_u32 v26, 2048, v24
    v_add_u32 v27, 3072, v24
    s_mul_i32 s51, s49, {XCH}
    s_add_u32 s51, s51, s52
    s_add_u32 s51, s51, {XREV+480}
    v_lshlrev_b32 v10, 5, v8
    v_sub_u32 v10, s51, v10
    v_lshl_add_u32 v28, v9, 4, v10
    s_lshl_b32 s51, s49, 2
    s_add_u32 s51, s51, s50
    s_add_u32 s51, s51, 2
    s_mul_i32 s51, s51, {RS}
    v_lshrrev_b32 v10, 5, v1
    v_lshlrev_b32 v10, 6, v10
    v_lshl_add_u32 v10, v1, 3, v10
    v_add_u32 v29, s51, v10
    v_and_b32 v8, 3, v1
    v_lshrrev_b32 v9, 2, v1
    v_lshl_add_u32 v9, v8, 4, v9
    v_lshrrev_b32 v8, 1, v8
    v_lshl_add_u32 v9, v8, 3, v9
    s_mul_i32 s51, s40, 576
    v_lshl_add_u32 v30, v9, 3, s51
    s_waitcnt lgkmcnt(0)
    s_barrier
    """)
    stamp(8)
    if stamps: a("s_memtime s[90:91]")
    if dump == "lds":
        a(f"""
        s_mul_i32 s49, s41, 0x14000
        s_add_u32 s49, s49, {WS_DBG}
        s_cmp_ge_u32 s41, 4
        s_cbranch_scc1 L_nodump
        v_lshlrev_b32 v8, 4, v0
        s_mov_b32 s50, 10
        L_dump:
        ds_read_b128 v[32:35], v8
        s_waitcnt lgkmcnt(0)
        buffer_store_dwordx4 v[32:35], v8, s[8:11], s49 offen
        s_waitcnt vmcnt(0)
        v_add_u32 v8, 8192, v8
        s_sub_u32 s50, s50, 1
        s_cmp_lg_u32 s50, 0
        s_cbranch_scc1 L_dump
        L_nodump:
        s_barrier
        """)
    a("s_cmp_ge_u32 s40, 4\ns_cbranch_scc1 L_c_noconv")
    A = lambda s: 32 + 4*s
    B = lambda u: 64 + 4*u
    C = lambda j: 96 + 4*j
    def ldAB(n):
        o = 128*(n & 1)
        a(f"ds_read2_b32 v[{A(n)}:{A(n)+1}], v{24+(n>>1)} offset0:{o} offset1:{o+1}")
        a(f"ds_read2_b32 v[{A(n)+2}:{A(n)+3}], v{24+(n>>1)} offset0:{o+2} offset1:{o+3}")
        a(f"ds_read_b128 v[{B(n)}:{B(n)+3}], v28 offset:{512*(7-n)}")
    for n in (7, 6, 5, 4): ldAB(n)
    a("s_waitcnt lgkmcnt(3)")
    for n in (0, 1, 2, 3): ldAB(n)
    for j in range(8):
        for r in range(4): a(f"v_mov_b32 v{C(j)+r}, 0")
    a("s_mov_b32 s49, 4\nL_c_conv:")
    for r in (24, 25, 26, 27, 28): a(f"v_add_u32 v{r}, 64, v{r}")
    def mm(s, u): a(f"v_mfma_f32_16x16x32_bf16 v[{C(s+u)}:{C(s+u)+3}], v[{A(s)}:{A(s)+3}], v[{B(u)}:{B(u)+3}], v[{C(s+u)}:{C(s+u)+3}]")
    for n in (7, 6, 5, 4):
        for i in range(8 - n):
            if i == 7 - n: a("s_waitcnt lgkmcnt(9)")
            mm(n, i); mm(i, n)
        ldAB(n)
    for n in (0, 1, 2, 3):
        mm(n, n)
        for i in range(n + 1, 4):
            mm(n, i); mm(i, n)
        if n == 0: a("s_waitcnt lgkmcnt(12)")
        ldAB(n)
    a("""
    s_sub_u32 s49, s49, 1
    s_cmp_lg_u32 s49, 0
    s_cbranch_scc1 L_c_conv
    s_waitcnt lgkmcnt(0)
    """)
    for j in (7, 0, 1, 2, 3, 4, 5, 6):
        a(f"v_cvt_pk_bf16_f32 v{32+2*j}, v{C(j)}, v{C(j)+1}\nv_cvt_pk_bf16_f32 v{33+2*j}, v{C(j)+2}, v{C(j)+3}")
        a(f"ds_write_b64 v29, v[{32+2*j}:{33+2*j}] offset:{576*j}")
    a("s_waitcnt lgkmcnt(0)\nL_c_noconv:\ns_barrier")
    stamp(9)
    if stamps: a("s_memtime s[92:93]")
    for i, rg in enumerate((2, 6, 3, 7)):
        a(f"ds_read_b64 v[{32+2*i}:{33+2*i}], v30 offset:{rg*RS}")
    a("s_mov_b32 s49, 0x3f80\ns_mov_b32 s50, 0x3f800000")
    for hh in range(2):
        a(f"s_waitcnt lgkmcnt({2-2*hh})")
        for r in range(4):
            for ch in range(2):
                a(f"v_dot2c_f32_bf16 v{16+2*r+ch}, s{49+(r&1)}, v{32+4*hh+2*ch+(r>>1)}")
    for r in range(4):
        a(f"v_cvt_pk_bf16_f32 v{40+r}, v{16+2*r}, v{17+2*r}")
        a(f"buffer_store_dword v{40+r}, v6, s[12:15], s48 offen offset:{896*r}")
    stamp(10)
    a(f"""
    s_cmp_lg_u32 s40, 7
    s_cbranch_scc1 L_c_nofp
    v_mul_u32_u24 v8, 3584, v1
    s_lshl_b32 s51, s41, 4
    s_add_u32 s51, s51, {WS_FFN}
    v_mov_b32 v44, 0
    v_mov_b32 v45, 0
    s_mov_b32 s49, 0
    s_mov_b32 exec_hi, 0xffffff
    L_c_fpoll:
    buffer_load_dwordx4 v[44:47], v8, s[8:11], s51 offen sc1
    s_waitcnt vmcnt(0)
    v_cmp_ne_u32 vcc, s42, v47
    s_cbranch_vccz L_c_fpolled
    s_add_u32 s49, s49, 1
    s_cmp_ge_u32 s49, {SPIN_MAX}
    s_cbranch_scc1 L_c_fpolled
    s_mov_b64 exec, vcc
    s_sleep 2
    s_branch L_c_fpoll
    L_c_fpolled:
    s_mov_b64 exec, -1
    v_readfirstlane_b32 s52, v46
    """)
    for sh in (1, 2, 4, 8):
        for r in (44, 45):
            a(f"v_add_f32_dpp v{r}, v{r}, v{r} row_shr:{sh} row_mask:0xf bank_mask:0xf bound_ctrl:0")
    for r in (44, 45): a(f"v_add_f32_dpp v{r}, v{r}, v{r} row_bcast:15 row_mask:0xa bank_mask:0xf")
    for r in (44, 45): a(f"v_add_f32_dpp v{r}, v{r}, v{r} row_bcast:31 row_mask:0xc bank_mask:0xf")
    a(f"""
    v_mov_b32 v46, s52
    v_mov_b32 v8, {MISC}
    s_mov_b32 exec_lo, 0
    s_brev_b32 exec_hi, 1
    ds_write_b128 v8, v[44:47]
    s_cmp_lg_u32 s41, 0
    s_cbranch_scc1 L_c_noep
    v_mov_b32 v9, s42
    buffer_store_dword v9, off, s[8:11], 0
    L_c_noep:
    s_mov_b64 exec, -1
    s_waitcnt lgkmcnt(0)
    L_c_nofp:
    s_barrier
    v_mov_b32 v8, {MISC}
    ds_read_b128 v[44:47], v8
    s_waitcnt lgkmcnt(0)
    v_readfirstlane_b32 s52, v46
    v_lshrrev_b32 v9, 2, v46
    v_cmp_eq_u32 vcc, v9, v0
    s_and_saveexec_b64 s[60:61], vcc
    s_cbranch_execz L_c_end
    s_bitcmp1_b32 s52, 0
    s_cselect_b64 vcc, -1, 0
    v_cndmask_b32 v16, v16, v18, vcc
    v_cndmask_b32 v17, v17, v19, vcc
    v_cndmask_b32 v20, v20, v22, vcc
    v_cndmask_b32 v21, v21, v23, vcc
    s_bitcmp1_b32 s52, 1
    s_cselect_b64 vcc, -1, 0
    v_cndmask_b32 v16, v16, v20, vcc
    v_cndmask_b32 v17, v17, v21, vcc
    v_pk_add_f32 v[16:17], v[16:17], v[44:45]
    v_mul_u32_u24 v9, 896, v46
    v_cvt_pk_bf16_f32 v16, v16, v17
    buffer_store_dword v16, v9, s[12:15], s48 offen
    L_c_end:
    """)
    if stamps or probe:
        a("s_waitcnt vmcnt(0)")
        stamp(11)
    stamp_flush(15)
    probe_end("L_c_probe", None)
    a("L_exit:\ns_endpgm")
    F_XS, F_PART, F_MISC = 0, 1024, 5120
    role[0] = "f"
    a("""
    L_ffn:
    s_load_dwordx2 s[16:17], s[0:1], 72
    s_load_dwordx2 s[20:21], s[0:1], 80
    s_load_dwordx2 s[24:25], s[0:1], 88
    s_sub_u32 s41, s2, 224
    """)
    srd(16, 1605632); srd(20, 1605632); srd(24, 1605632)
    a("""
    v_and_b32 v3, 15, v1
    v_lshrrev_b32 v4, 4, v1
    v_lshrrev_b32 v5, 3, v3
    v_lshl_add_u32 v5, v5, 2, v4
    v_mul_u32_u24 v5, 28672, v5
    v_and_b32 v6, 7, v3
    v_lshl_add_u32 v5, v6, 4, v5
    s_mul_i32 s44, s40, 229376
    s_lshl_b32 s45, s41, 7
    s_add_u32 s44, s44, s45
    s_add_u32 s45, s44, 7168
    s_add_u32 s46, s44, 14336
    s_add_u32 s47, s44, 21504
    s_and_b32 s50, s40, 3
    s_lshr_b32 s51, s40, 2
    s_lshl_b32 s48, s50, 4
    v_add_u32 v7, s48, v3
    v_mul_u32_u24 v8, 7168, v4
    v_cmp_gt_u32 vcc, 56, v7
    v_lshl_add_u32 v8, v7, 4, v8
    v_mov_b32 v9, 0x7fffffff
    v_lshl_add_u32 v10, v7, 2, v4
    v_lshlrev_b32 v10, 4, v10
    v_cndmask_b32 v8, v9, v8, vcc
    v_cndmask_b32 v10, v9, v10, vcc
    s_lshl_b32 s52, s41, 1
    s_add_u32 s52, s52, s51
    s_mul_i32 s48, s52, 28672
    s_add_u32 s49, s48, 3584
    s_mul_i32 s52, s52, 3584
    """)
    a(f"s_add_u32 s52, s52, {WS_FFN}")
    a("s_waitcnt lgkmcnt(0)")
    stamp(1)
    a("s_load_dword s42, s[8:9], 0")
    G, U, D = 32, 64, 96
    for r in range(8):
        a(f"buffer_load_dwordx4 v[{D+4*r}:{D+4*r+3}], v8, s[24:27], s{48+(r>>2)} offen offset:{896*(r&3)}")
    a("s_cmp_lg_u32 s40, 7\ns_cbranch_scc1 L_f_gu\ns_waitcnt vmcnt(0)\ns_branch L_f_nogu\nL_f_gu:")
    for base, sr in ((G, 16), (U, 20)):
        for r in range(8):
            a(f"buffer_load_dwordx4 v[{base+4*r}:{base+4*r+3}], v5, s[{sr}:{sr+3}], s{44+(r>>1)} offen offset:{3584*(r&1)}")
    a("s_waitcnt vmcnt(16)\nL_f_nogu:")
    a("s_mov_b32 s54, 0x05040100\ns_mov_b32 s55, 0x07060302")
    def transp(b):
        p = lambda rp, d: (b + 8*rp + d, b + 8*rp + 4 + d)
        for i in range(4):
            x, y = p(i, i)
            a(f"v_perm_b32 v12, v{y}, v{x}, s54\nv_perm_b32 v{y}, v{y}, v{x}, s55\nv_mov_b32 v{x}, v12")
        for i in range(4):
            for j in range(i + 1, 4):
                x, y = p(i, j); u, w = p(j, i)
                a(f"""
                v_perm_b32 v12, v{y}, v{x}, s54
                v_perm_b32 v13, v{y}, v{x}, s55
                v_perm_b32 v{x}, v{w}, v{u}, s54
                v_perm_b32 v{y}, v{w}, v{u}, s55
                v_mov_b32 v{u}, v12
                v_mov_b32 v{w}, v13
                """)
    transp(D)
    a("s_cmp_eq_u32 s40, 7\ns_cbranch_scc1 L_f_router")
    a("s_waitcnt vmcnt(8)")
    transp(G)
    a("s_waitcnt vmcnt(0)")
    transp(U)
    a("s_waitcnt lgkmcnt(0)")
    next_tag()
    a("s_branch L_f_join")
    a(f"""
    L_f_router:
    v_lshlrev_b32 v14, 4, v1
    s_mov_b32 s44, {WS_KEY}
    s_mov_b32 s45, {WS_KEY+4096}
    s_waitcnt lgkmcnt(0)
    """)
    next_tag()
    a("s_mov_b32 s46, 0")
    stamp(2)
    a("L_f_kpoll:")
    for i in range(8):
        a(f"buffer_load_dwordx4 v[{32+4*i}:{35+4*i}], v14, s[8:11], s{44+(i>>2)} offen offset:{1024*(i&3)} sc1")
    a("v_mov_b32 v15, 0\nv_mov_b32 v16, 0")
    for i in range(8):
        a(f"s_waitcnt vmcnt({7-i})")
        a(f"v_bitop3_b32 v15, v{33+4*i}, s42, v15 bitop3:0xbe")
        a(f"v_max3_u32 v16, v{32+4*i}, v{34+4*i}, v16")
        a(f"v_bitop3_b32 v15, v{35+4*i}, s42, v15 bitop3:0xbe")
    a(f"""
    v_cmp_ne_u32 vcc, 0, v15
    s_cbranch_vccz L_f_kpolled
    s_add_u32 s46, s46, 1
    s_cmp_ge_u32 s46, {SPIN_MAX}
    s_cbranch_scc1 L_f_kpolled
    s_mov_b64 exec, vcc
    s_sleep 2
    s_branch L_f_kpoll
    L_f_kpolled:
    s_mov_b64 exec, -1
    """)
    stamp(3)
    for sh in (1, 2, 4, 8):
        a(f"v_max_u32_dpp v16, v16, v16 row_shr:{sh} row_mask:0xf bank_mask:0xf")
    a("v_max_u32_dpp v16, v16, v16 row_bcast:15 row_mask:0xa bank_mask:0xf")
    a("v_max_u32_dpp v16, v16, v16 row_bcast:31 row_mask:0xc bank_mask:0xf")
    a(f"""
    v_readlane_b32 s44, v16, 63
    s_and_b32 s45, s44, 0x7ff
    s_sub_u32 s45, 2047, s45
    s_mul_i32 s46, s45, 896
    s_lshr_b32 s47, s45, 2
    s_lshl_b32 s47, s47, 4
    s_bfe_u32 s56, s45, 0x10001
    s_lshl_b32 s56, s56, 13
    s_add_u32 s47, s47, s56
    s_add_u32 s47, s47, {WS_STAT}
    s_mov_b32 exec_hi, 0xffffff
    buffer_load_dwordx4 v[32:35], v14, s[4:7], s46 offen
    s_mov_b32 s46, 0
    L_f_spoll:
    buffer_load_dwordx4 v[36:39], off, s[8:11], s47 sc1
    s_ashr_i32 s56, s44, 31
    s_not_b32 s56, s56
    s_or_b32 s56, s56, 0x80000000
    s_xor_b32 s56, s56, s44
    s_and_b32 s56, s56, 0xffff0000
    v_mov_b32 v17, 0xbfb8aa3b
    v_mul_f32 v17, s56, v17
    v_exp_f32 v17, v17
    v_add_f32 v17, 1.0, v17
    v_rcp_f32 v17, v17
    v_mov_b32 v16, s45
    s_add_u32 s46, s46, 1
    s_cmp_ge_u32 s46, {SPIN_MAX}
    s_cbranch_scc1 L_f_spolled
    s_waitcnt vmcnt(0)
    v_cmp_ne_u32 vcc, s42, v39
    s_cbranch_vccnz L_f_spoll
    L_f_spolled:
    s_waitcnt vmcnt(0)
    """)
    stamp(4)
    a(f"""
    s_bitcmp1_b32 s45, 0
    s_cselect_b64 vcc, -1, 0
    v_lshlrev_b32 v40, 16, v38
    v_and_b32 v41, 0xffff0000, v38
    v_cndmask_b32 v36, v36, v37, vcc
    v_cndmask_b32 v37, v40, v41, vcc
    """)
    for d in range(4):
        a(f"v_lshlrev_b32 v{40+2*d}, 16, v{32+d}\nv_and_b32 v{41+2*d}, 0xffff0000, v{32+d}")
    for d in range(4):
        a(f"v_pk_add_f32 v[{40+2*d}:{41+2*d}], v[{40+2*d}:{41+2*d}], v[36:37] op_sel:[0,1] op_sel_hi:[1,1] neg_lo:[0,1] neg_hi:[0,1]")
    for d in range(4):
        a(f"v_pk_mul_f32 v[{40+2*d}:{41+2*d}], v[{40+2*d}:{41+2*d}], v[36:37] op_sel:[0,0] op_sel_hi:[1,0]")
    for d in range(4):
        a(f"v_cvt_pk_bf16_f32 v{32+d}, v{40+2*d}, v{41+2*d}")
    a(f"""
    ds_write_b128 v14, v[32:35] offset:{F_XS}
    v_mov_b32 v15, {F_MISC}
    ds_write_b64 v15, v[16:17]
    s_mov_b64 exec, -1
    L_f_join:
    """)
    a(f"""
    v_and_b32 v14, 1, v3
    v_lshlrev_b32 v14, 6, v14
    v_lshl_add_u32 v14, v4, 4, v14
    s_lshl_b32 s44, s40, 7
    v_add_u32 v14, s44, v14
    v_lshl_add_u32 v15, v6, 2, v4
    v_lshlrev_b32 v15, 4, v15
    s_lshl_b32 s44, s40, 9
    v_add_u32 v15, s44, v15
    v_lshl_add_u32 v16, v4, 3, v6
    v_lshlrev_b32 v16, 3, v16
    s_lshl_b32 s44, s51, 8
    v_add_u32 v16, s44, v16
    v_mov_b32 v17, {F_MISC}
    s_waitcnt lgkmcnt(0)
    s_barrier
    """)
    stamp(5)
    a(f"""
    ds_read_b64 v[30:31], v17
    s_cmp_eq_u32 s40, 7
    s_cbranch_scc1 L_f_nogu2
    ds_read_b128 v[20:23], v14 offset:{F_XS}
    s_waitcnt lgkmcnt(0)
    """)
    def dreg(n): return 24 if n == 0 else 32 + 4*(n-1)
    def red(n):
        mtx, c = n >> 3, n & 7
        a(f"v_add_f32_dpp v{4+2*(c&1)+mtx}, v{dreg(n)+1}, v{dreg(n)} row_ror:8 row_mask:{hex(1<<(c>>1))} bank_mask:0xf")
    for n in range(16):
        a(f"v_mfma_f32_16x16x32_bf16 v[{dreg(n)}:{dreg(n)+3}], v[20:23], v[{32+4*n}:{35+4*n}], 0")
        if n >= 8: red(n - 8)
    for n in range(8, 16): red(n)
    a(f"""
    s_mov_b32 exec_lo, 0x00ff00ff
    s_mov_b32 exec_hi, 0x00ff00ff
    ds_write_b128 v15, v[4:7] offset:{F_PART}
    s_mov_b64 exec, -1
    L_f_nogu2:
    s_waitcnt lgkmcnt(0)
    s_barrier
    """)
    stamp(6)
    for w in range(7):
        a(f"ds_read_b64 v[{32+2*w}:{33+2*w}], v16 offset:{F_PART+512*w}")
    a("""
    s_waitcnt lgkmcnt(5)
    v_pk_add_f32 v[32:33], v[32:33], v[34:35]
    s_waitcnt lgkmcnt(3)
    v_pk_add_f32 v[36:37], v[36:37], v[38:39]
    s_waitcnt lgkmcnt(1)
    v_pk_add_f32 v[40:41], v[40:41], v[42:43]
    v_pk_add_f32 v[32:33], v[32:33], v[36:37]
    s_waitcnt lgkmcnt(0)
    v_pk_add_f32 v[40:41], v[40:41], v[44:45]
    v_pk_add_f32 v[32:33], v[32:33], v[40:41]
    v_mul_f32 v34, 0xbfb8aa3b, v32
    v_exp_f32 v34, v34
    v_mul_f32 v32, v32, v33
    v_add_f32 v34, 1.0, v34
    v_rcp_f32 v34, v34
    v_mov_b32 v6, v30
    v_mul_f32 v32, v32, v34
    v_mov_b32 v7, s42
    v_mov_b32_dpp v33, v32 quad_perm:[1,1,3,3] row_mask:0xf bank_mask:0xf
    v_cvt_pk_bf16_f32 v32, v32, v33
    """)
    for q in range(4):
        a(f"v_mov_b32_dpp v{20+q}, v32 row_newbcast:{2*q} row_mask:0xf bank_mask:0xf")
    for c in range(8):
        a(f"v_mfma_f32_16x16x32_bf16 v[{40+4*c}:{43+4*c}], v[20:23], v[{D+4*c}:{D+4*c+3}], 0")
    for c in range(8):
        a(f"v_mul_f32_dpp v{4+(c&1)}, v{40+4*c}, v31 quad_perm:[0,1,2,3] row_mask:{hex(1<<(c>>1))} bank_mask:0xf")
    a("buffer_store_dwordx4 v[4:7], v10, s[8:11], s52 offen sc1")
    stamp(7)
    if stamps or probe:
        a("s_waitcnt vmcnt(0)")
        stamp(8)
    stamp_flush(9)
    probe_end("L_f_probe", None)
    a("s_endpgm")
    npad = a.pad(verbose=bool(os.environ.get("PADV")))
    hdr = open(os.path.join(os.path.dirname(__file__), "header.txt")).read()
    src = hdr + f"""; @launch grid=(252,1,1) block=(512,1,1) lds={LDS_BYTES}
.amdgcn_target "amdgcn-amd-amdhsa--gfx950"
.text
.globl {KN}
.p2align 8
.type {KN},@function
""" + a.text() + f""".section .rodata,"a"
.p2align 6
.amdhsa_kernel {KN}
  .amdhsa_next_free_vgpr 128
  .amdhsa_next_free_sgpr {96 if (stamps or probe) else 64}
  .amdhsa_accum_offset 128
  .amdhsa_group_segment_fixed_size 0
  .amdhsa_kernarg_size 120
  .amdhsa_user_sgpr_count 2
  .amdhsa_user_sgpr_kernarg_segment_ptr 1
  .amdhsa_system_sgpr_workgroup_id_x 1
.end_amdhsa_kernel
"""
    return src

if __name__ == "__main__":
    out = sys.argv[1]
    opts = sys.argv[2:]
    probe = None
    for o in opts:
        if o.startswith("probe="):
            r, k, lo, hi = o[6:].split(",")
            probe = (r, int(k), (int(lo), int(hi)))
    open(out, "w").write(gen(stamps="stamps" in opts, dump="lds" if "lds" in opts else None, probe=probe))
```

```python
import sys, os
sys.path.insert(0, os.path.dirname(__file__))
from asmlib import Asm
NAME = "parallel_sum__ssm_conv_s4d__moe_arch_mod__prompt"
KN = NAME + "_kernel"

WS_STAT = 0x1000
WS_KEY  = 0x5000
WS_FFN  = 0x8000
WS_XIN  = 0x40000
WS_DBG  = 0x800000
WS_SIZE = 0x1000000
RS   = 8704
XREV = 8*RS
XCH  = 4576
KC   = XREV + 2*XCH + 64
KCS  = 4160
MISC = KC + 4*KCS
LDS_BYTES = MISC + 64
LOG2E = 0x3fb8aa3b
SPIN_MAX = 200000
OOB = 0x7fffffff

class DS:
    def __init__(self, a): self.a = a; self.q = []; self.done = 0
    def issue(self, text, tag=None):
        self.a(text); self.q.append(tag)
    def need(self, tag):
        idx = max((i for i, t in enumerate(self.q) if t == tag), default=-1)
        if idx < self.done: return
        n = len(self.q) - 1 - idx
        n = min(n, 15)
        self.a(f"s_waitcnt lgkmcnt({n})")
        self.done = len(self.q) - n

def gen(stamps=False, probe=None, opt=()):
    a = Asm()
    role = ["c"]
    def stamp(k, wait=False):
        if stamps or (probe and (k == 0 or (probe[0] == role[0] and probe[1] == k))):
            a(f"s_memrealtime s[{64+2*k}:{65+2*k}]")
            if wait: a("s_waitcnt lgkmcnt(0)")
    def finish(lbl, n):
        if stamps or probe:
            a("s_waitcnt vmcnt(0)"); stamp(n - 1)
        if stamps:
            a("s_waitcnt lgkmcnt(0)")
            a(f"s_lshl_b32 s62, s2, 4\ns_add_u32 s62, s62, s40\ns_lshl_b32 s62, s62, 6\ns_add_u32 s62, s62, {WS_DBG}")
            a(f"s_mov_b32 s56, s34\ns_mov_b32 s57, s35\ns_mov_b32 s58, {WS_SIZE}\ns_mov_b32 s59, 0x20000")
            a("s_mov_b64 exec, 1\nv_mov_b32 v1, 0")
            for k in range(n):
                a(f"v_mov_b32 v2, s{64+2*k}\nbuffer_store_dword v2, v1, s[56:59], s62 offen offset:{4*k}")
        if probe and (role[0] != "k" or probe[0] == "k"):
            if role[0] == "k": a("s_barrier")
            a("s_waitcnt vmcnt(0) lgkmcnt(0)\ns_add_u32 s96, s64, 3000")
            if probe[0] == role[0]:
                lo, hi = probe[2]
                a(f"s_cmp_lt_u32 s40, {lo}\ns_cbranch_scc1 {lbl}\ns_cmp_gt_u32 s40, {hi}\ns_cbranch_scc1 {lbl}")
                a(f"s_sub_u32 s97, s{64+2*probe[1]}, s64\ns_lshl_b32 s97, s97, 2\ns_add_u32 s96, s96, s97")
            a(f"{lbl}:\ns_memrealtime s[98:99]\ns_waitcnt lgkmcnt(0)\ns_sub_u32 s98, s98, s96\ns_cmp_lt_i32 s98, 0\ns_cbranch_scc1 {lbl}")
        a("s_endpgm")
    def srd(base, ptr, size):
        if ptr != base: a(f"s_mov_b64 s[{base}:{base+1}], s[{ptr}:{ptr+1}]")
        a(f"s_mov_b32 s{base+2}, {size}\ns_mov_b32 s{base+3}, 0x20000")
    def cmul(d, x, y, t=None):
        t = d if t is None else t
        a(f"v_pk_mul_f32 v[{t}:{t+1}], v[{x}:{x+1}], v[{y}:{y+1}] op_sel_hi:[0,1]")
        a(f"v_pk_fma_f32 v[{d}:{d+1}], v[{x}:{x+1}], v[{y}:{y+1}], v[{t}:{t+1}] op_sel:[1,1,0] op_sel_hi:[1,0,1] neg_lo:[0,1,0]")
    def next_tag():
        a("s_mul_i32 s42, s42, 0x9e3779b1\ns_add_u32 s42, s42, 0x7f4a7c15")
    a(f"{KN}:")
    stamp(0)
    a(f"""
    s_load_dwordx16 s[4:19], s[0:1], 0
    s_load_dwordx8 s[20:27], s[0:1], 64
    s_load_dwordx2 s[28:29], s[0:1], 96
    s_load_dwordx2 s[34:35], s[0:1], 112
    v_lshrrev_b32 v2, 6, v0
    v_and_b32 v1, 63, v0
    s_and_b32 s43, s2, 7
    v_readfirstlane_b32 s40, v2
    s_lshr_b32 s44, s2, 3
    s_cmp_ge_u32 s44, 28
    s_cbranch_scc1 L_ffn
    s_mul_i32 s41, s43, 28
    s_add_u32 s41, s41, s44
    s_cmp_ge_u32 s40, 8
    s_cbranch_scc1 L_kw
    """)
    a(f"""
    s_mul_i32 s45, s40, 28
    s_add_u32 s45, s45, s44
    s_lshl_b32 s46, s43, 7
    s_add_u32 s47, s45, s46
    s_mul_i32 s46, s47, 1792
    v_and_b32 v3, 31, v1
    v_lshrrev_b32 v5, 5, v1
    v_cmp_gt_u32 vcc, 28, v3
    v_lshlrev_b32 v3, 5, v3
    v_mul_u32_u24 v4, 896, v5
    v_add_u32 v4, v4, v3
    v_bfrev_b32 v6, -2
    v_cndmask_b32 v4, v6, v4, vcc
    """)
    a("""
    v_and_b32 v7, 3, v1
    v_bfe_u32 v8, v1, 4, 1
    v_lshl_add_u32 v7, v8, 2, v7
    v_bfe_u32 v8, v1, 2, 2
    v_lshl_add_u32 v8, v5, 2, v8
    v_and_b32 v9, 3, v2
    v_lshl_add_u32 v8, v9, 3, v8
    v_mul_u32_u24 v9, 3584, v7
    v_lshl_add_u32 v9, v8, 2, v9
    s_mul_i32 s49, s44, 37
    s_lshr_b32 s49, s49, 8
    s_mul_i32 s50, s49, 7
    s_sub_u32 s50, s44, s50
    s_lshl_b32 s51, s43, 2
    s_add_u32 s49, s49, s51
    s_mul_i32 s51, s49, 57344
    s_lshl_b32 s52, s50, 7
    s_add_u32 s51, s51, s52
    s_add_u32 s52, s51, 28672
    s_lshl_b32 s48, s41, 2
    """)
    stamp(12)
    a("s_waitcnt lgkmcnt(0)")
    stamp(1)
    a("s_load_dword s42, s[34:35], 0")
    a("s_load_dword s55, s[16:17], s48")
    srd(4, 4, 1835008)
    a("s_cmp_ge_u32 s45, 128\ns_cbranch_scc1 L_x_nost0")
    a("""
    buffer_load_dwordx4 v[32:35], v4, s[4:7], s46 offen
    buffer_load_dwordx4 v[36:39], v4, s[4:7], s46 offen offset:16
    """)
    srd(8, 20, 896)
    a("""
    buffer_load_dwordx4 v[40:43], v3, s[8:11], 0 offen
    buffer_load_dwordx4 v[44:47], v3, s[8:11], 0 offen offset:16
    L_x_nost0:
    s_cmp_lt_u32 s40, 4
    s_cbranch_scc1 L_x_notile0
    """)
    for k, r in enumerate([64, 65, 66, 72]):
        a(f"buffer_load_dword v{r}, v9, s[4:7], s51 offen offset:{k*896}")
    for k, r in enumerate([68, 69, 70, 73]):
        a(f"buffer_load_dword v{r}, v9, s[4:7], s52 offen offset:{k*896}")
    a("L_x_notile0:")
    srd(36, 34, WS_SIZE); srd(28, 28, 1835008)
    a(f"""
    v_mul_u32_u24 v10, 12288, v8
    v_lshl_add_u32 v10, v7, 4, v10
    s_mul_i32 s53, s50, 393216
    s_mul_i32 s49, s49, 384
    s_add_u32 s53, s53, s49
    s_add_u32 s53, s53, {WS_XIN}
    v_mov_b32 v48, 0
    v_mov_b32 v49, 0
    v_mov_b32 v50, 0
    v_mov_b32 v51, 0
    v_lshrrev_b32 v11, 4, v0
    v_mul_u32_u24 v11, 384, v11
    v_and_b32 v12, 7, v0
    v_lshl_add_u32 v12, v12, 4, v11
    v_and_b32 v13, 15, v0
    v_lshl_add_u32 v11, v13, 4, v11
    v_lshlrev_b32 v13, 4, v0
    v_and_b32 v7, 8, v0
    v_cmp_ne_u32 s[56:57], 0, v7
    v_lshlrev_b32 v7, 3, v0
    v_sub_u32 v7, {XREV+4088}, v7
    v_mul_u32_u24 v6, 3584, v0
    v_and_b32 v8, 3, v1
    v_lshrrev_b32 v9, 2, v1
    v_lshl_add_u32 v24, v8, 4, v9
    v_lshrrev_b32 v25, 1, v8
    v_lshl_add_u32 v24, v25, 3, v24
    s_mul_i32 s51, s40, {8*576}
    v_lshl_add_u32 v24, v24, 3, s51
    """)
    a(f"""
    s_lshl_b32 s51, s44, 4
    v_add_u32 v9, s51, v9
    v_lshl_add_u32 v8, v8, 3, s43
    s_movk_i32 s52, 128
    s_cmp_eq_u32 s40, 7
    s_cselect_b32 s51, s52, 3584
    s_cselect_b32 s52, 57344, s52
    s_cselect_b64 s[12:13], s[26:27], s[24:25]
    s_cmp_eq_u32 s40, 5
    s_cselect_b64 s[12:13], s[22:23], s[12:13]
    s_mov_b32 s14, 1605632
    s_mov_b32 s15, 0x20000
    v_cmp_gt_u32 vcc, 28, v8
    v_mul_u32_u24 v9, s51, v9
    v_mul_u32_u24 v8, s52, v8
    v_add_u32 v25, v8, v9
    v_bfrev_b32 v8, -2
    v_cndmask_b32 v25, v8, v25, vcc
    """)
    a(f"""
    s_mul_i32 s51, s40, {XCH}
    s_add_u32 s51, s51, {XREV+4096}
    v_lshl_add_u32 v8, v1, 4, s51
    s_mov_b32 s52, 30
    s_cmp_lt_u32 s40, 2
    s_cbranch_scc1 L_x_pad
    s_cmp_lg_u32 s40, 2
    s_cbranch_scc1 L_x_nopad
    v_lshrrev_b32 v8, 1, v1
    v_mul_u32_u24 v8, {KCS-32}, v8
    v_lshl_add_u32 v8, v1, 4, v8
    v_add_u32 v8, {KC}, v8
    s_mov_b32 s52, 8
    L_x_pad:
    v_cmp_gt_u32 vcc, s52, v1
    s_and_saveexec_b64 s[60:61], vcc
    ds_write_b128 v8, v[48:51]
    s_mov_b64 exec, s[60:61]
    L_x_nopad:
    s_and_b32 s49, s47, 1
    s_lshl_b32 s49, s49, 13
    s_lshr_b32 s50, s47, 1
    s_lshl_b32 s50, s50, 4
    s_add_u32 s58, s49, s50
    s_add_u32 s58, s58, {WS_STAT}
    s_lshl_b32 s59, s47, 3
    s_add_u32 s59, s59, {WS_KEY}
    s_lshl_b32 s49, s47, 1
    s_sub_u32 s49, 2047, s49
    v_sub_u32 v58, s49, v5
    s_mov_b32 s50, 0xffff0000
    s_mov_b32 s49, 0x3f803f80
    s_waitcnt lgkmcnt(0)
    """)
    next_tag()
    a("s_barrier")
    stamp(2)
    a("""
    v_mov_b32 v55, s42
    v_mov_b32 v57, s42
    v_mov_b32 v67, s42
    v_mov_b32 v71, s42
    v_mov_b32 v75, s42
    s_cmp_ge_u32 s45, 128
    s_cbranch_scc1 L_x_nost1
    s_cmp_lt_u32 s40, 4
    s_cbranch_scc1 L_x_w4
    s_waitcnt vmcnt(8)
    s_branch L_x_w4j
    L_x_w4:
    s_waitcnt vmcnt(0)
    L_x_w4j:
    """)
    stamp(3)
    for i in range(8):
        a(f"""
        v_dot2c_f32_bf16 v48, s49, v{32+i}
        v_dot2c_f32_bf16 v49, v{32+i}, v{32+i}
        v_dot2c_f32_bf16 v50, v{32+i}, v{40+i}
        v_dot2c_f32_bf16 v51, s49, v{40+i}
        """)
    for sh in (1, 2, 4, 8):
        for r in (48, 49, 50, 51):
            a(f"v_add_f32_dpp v{r}, v{r}, v{r} row_shr:{sh} row_mask:0xf bank_mask:0xf bound_ctrl:0")
    for r in (48, 49, 50, 51):
        a(f"v_add_f32_dpp v{r}, v{r}, v{r} row_bcast:15 row_mask:0xa bank_mask:0xf")
    a(f"""
    v_mul_f32 v48, 0x3b124925, v48
    v_mul_f32 v49, 0x3b124925, v49
    v_fma_f32 v49, -v48, v48, v49
    v_max_f32 v49, 0, v49
    v_cvt_pk_bf16_f32 v52, v49, v48
    v_lshlrev_b32 v49, 16, v52
    v_add_f32 v49, 0x3727c5ac, v49
    v_cvt_pk_bf16_f32 v49, v49, v49
    v_lshlrev_b32 v49, 16, v49
    v_sqrt_f32 v49, v49
    v_and_b32 v54, 0xffff0000, v52
    v_cvt_pk_bf16_f32 v49, v49, v49
    v_lshlrev_b32 v49, 16, v49
    v_rcp_f32 v53, v49
    v_fma_f32 v50, -v54, v51, v50
    v_mov_b32_dpp v48, v54 row_bcast:31 row_mask:0xc bank_mask:0xf
    v_mul_f32 v50, v50, v53
    v_mov_b32_dpp v52, v53 row_bcast:31 row_mask:0xc bank_mask:0xf
    v_lshrrev_b32 v48, 16, v48
    v_cvt_pk_bf16_f32 v50, v50, v50
    v_or_b32 v54, v54, v48
    s_mov_b32 exec_lo, 0
    s_brev_b32 exec_hi, 1
    buffer_store_dwordx4 v[52:55], off, s[36:39], s58 sc1
    s_mov_b64 exec, -1
    v_ashrrev_i32 v51, 31, v50
    v_or_b32 v51, 0x80000000, v51
    v_xor_b32 v50, v50, v51
    v_and_or_b32 v56, v50, s50, v58
    v_max_u32_dpp v56, v56, v56 row_bcast:31 row_mask:0xc bank_mask:0xf
    s_mov_b32 exec_lo, 0
    s_brev_b32 exec_hi, 1
    buffer_store_dwordx2 v[56:57], off, s[36:39], s59 sc1
    s_mov_b64 exec, -1
    s_waitcnt vmcnt(2)
    s_branch L_x_st1j
    L_x_nost1:
    s_waitcnt vmcnt(0)
    L_x_st1j:
    s_cmp_lt_u32 s40, 4
    s_cbranch_scc1 L_x_notile1
    buffer_store_dwordx4 v[64:67], v10, s[36:39], s53 offen sc1
    buffer_store_dwordx4 v[68:71], v10, s[36:39], s53 offen offset:128 sc1
    buffer_store_dwordx4 v[72:75], v10, s[36:39], s53 offen offset:256 sc1
    """)
    if "nopf" not in opt:
        a("s_cmp_eq_u32 s40, 4\ns_cbranch_scc1 L_x_notile1")
        a("buffer_load_dword v26, v25, s[12:15], 0 offen")
        if "pf2" in opt: a("buffer_load_dword v27, v25, s[12:15], 0 offen offset:64")
    a("L_x_notile1:")
    stamp(4)
    a(f"""
    s_lshl_b32 s49, s55, 16
    s_and_b32 s50, s55, 0xffff0000
    v_mov_b32 v14, 1.0
    v_add_f32 v15, s50, v14
    v_add_f32 v14, s49, v14
    s_mul_i32 s51, s41, 12288
    s_add_u32 s51, s51, {WS_XIN}
    s_mov_b32 s52, {WS_STAT}
    s_mov_b32 s53, {WS_STAT+8192}
    s_mov_b32 s49, 0
    s_barrier
    """)
    stamp(5)
    def poll_loads():
        a("""
        buffer_load_dwordx4 v[112:115], v11, s[36:39], s51 offen sc1
        buffer_load_dwordx4 v[116:119], v12, s[36:39], s51 offen offset:256 sc1
        buffer_load_dwordx4 v[120:123], v13, s[36:39], s52 offen sc1
        buffer_load_dwordx4 v[124:127], v13, s[36:39], s53 offen sc1
        """)
    poll_loads()
    a("s_barrier")
    stamp(6)
    a(f"""
    L_x_poll:
    s_waitcnt vmcnt(0)
    v_xor_b32 v8, s42, v115
    v_bitop3_b32 v8, v119, s42, v8 bitop3:0xbe
    v_bitop3_b32 v8, v123, s42, v8 bitop3:0xbe
    v_bitop3_b32 v8, v127, s42, v8 bitop3:0xbe
    v_cmp_ne_u32 vcc, 0, v8
    s_cbranch_vccz L_x_polled
    s_add_u32 s49, s49, 1
    s_cmp_ge_u32 s49, {SPIN_MAX}
    s_cbranch_scc1 L_x_polled
    s_mov_b64 exec, vcc
    s_sleep 1
    """)
    poll_loads()
    a("""
    s_branch L_x_poll
    L_x_polled:
    s_mov_b64 exec, -1
    """)
    stamp(7)
    a("v_cndmask_b32 v115, v116, v117, s[56:57]")
    a("""
    v_lshlrev_b32 v8, 16, v122
    v_and_b32 v9, 0xffff0000, v122
    v_lshlrev_b32 v10, 16, v126
    v_and_b32 v11, 0xffff0000, v126
    """)
    for r in range(4):
        a(f"v_lshlrev_b32 v{16+2*r}, 16, v{112+r}\nv_and_b32 v{17+2*r}, 0xffff0000, v{112+r}")
    for r in range(4):
        e = r & 1; mm = 8 + 2*(r >> 1)
        a(f"v_pk_add_f32 v[{32+2*r}:{33+2*r}], v[{16+2*r}:{17+2*r}], v[{mm}:{mm+1}] op_sel:[0,{e}] op_sel_hi:[1,{e}] neg_lo:[0,1] neg_hi:[0,1]")
    for r in range(4):
        e = r & 1; rs = 120 + 4*(r >> 1)
        a(f"v_pk_mul_f32 v[{32+2*r}:{33+2*r}], v[{32+2*r}:{33+2*r}], v[{rs}:{rs+1}] op_sel:[0,{e}] op_sel_hi:[1,{e}]")
    a(f"""
    v_cvt_pk_bf16_f32 v40, v38, v36
    v_cvt_pk_bf16_f32 v41, v34, v32
    ds_write_b64 v7, v[40:41]
    v_cvt_pk_bf16_f32 v42, v39, v37
    v_cvt_pk_bf16_f32 v43, v35, v33
    ds_write_b64 v7, v[42:43] offset:{XCH}
    s_waitcnt lgkmcnt(0)
    s_barrier
    """)
    stamp(8)
    for r in range(4):
        a(f"v_pk_fma_f32 v[{16+2*r}:{17+2*r}], v[{32+2*r}:{33+2*r}], v[14:15], v[{16+2*r}:{17+2*r}]")
    PH = [[0, 1], [2, 3, 4], [5, 6, 7]]
    a(f"""
    s_mov_b32 s49, 0x3f80
    s_mov_b32 s50, 0x3f800000
    v_mul_u32_u24 v8, 3584, v1
    s_lshl_b32 s51, s41, 4
    s_add_u32 s51, s51, {WS_FFN}
    v_mov_b32 v52, 0
    v_mov_b32 v53, 0
    s_barrier
    s_cmp_lt_u32 s40, {PH[1][0]}
    s_cbranch_scc1 L_x_epi
    s_barrier
    s_cmp_lt_u32 s40, {PH[2][0]}
    s_cbranch_scc1 L_x_epi
    s_barrier
    L_x_epi:
    """)
    stamp(9, True)
    order = [0, 4, 1, 5, 2, 6, 3, 7]
    for i, kw in enumerate(order):
        a(f"ds_read_b64 v[{32+2*i}:{33+2*i}], v24 offset:{kw*576}")
    for hh in range(4):
        a(f"s_waitcnt lgkmcnt({6-2*hh})")
        for r in range(4):
            for ch in range(2):
                a(f"v_dot2c_f32_bf16 v{16+2*r+ch}, s{49+(r&1)}, v{32+4*hh+2*ch+(r>>1)}")
    for r in range(4):
        a(f"v_cvt_pk_bf16_f32 v{48+r}, v{16+2*r}, v{17+2*r}")
        a(f"buffer_store_dword v{48+r}, v6, s[28:31], s48 offen offset:{896*r}")
    stamp(10)
    a(f"""
    s_cmp_ge_u32 s40, {PH[2][0]}
    s_cbranch_scc1 L_x_nofp
    s_barrier
    s_cmp_ge_u32 s40, {PH[1][0]}
    s_cbranch_scc1 L_x_nofp
    s_barrier
    s_cmp_lg_u32 s40, 0
    s_cbranch_scc1 L_x_nofp
    s_mov_b32 s49, 0
    s_mov_b32 exec_hi, 0xffffff
    L_x_fpoll:
    buffer_load_dwordx4 v[52:55], v8, s[36:39], s51 offen sc1
    s_waitcnt vmcnt(0)
    v_cmp_ne_u32 vcc, s42, v55
    s_cbranch_vccz L_x_fpolled
    s_add_u32 s49, s49, 1
    s_cmp_ge_u32 s49, {SPIN_MAX}
    s_cbranch_scc1 L_x_fpolled
    s_mov_b64 exec, vcc
    s_sleep 1
    s_branch L_x_fpoll
    L_x_fpolled:
    s_mov_b64 exec, -1
    v_readfirstlane_b32 s52, v54
    """)
    stamp(13)
    for sh in (1, 2, 4, 8):
        for r in (52, 53):
            a(f"v_add_f32_dpp v{r}, v{r}, v{r} row_shr:{sh} row_mask:0xf bank_mask:0xf bound_ctrl:0")
    for r in (52, 53): a(f"v_add_f32_dpp v{r}, v{r}, v{r} row_bcast:15 row_mask:0xa bank_mask:0xf")
    for r in (52, 53): a(f"v_add_f32_dpp v{r}, v{r}, v{r} row_bcast:31 row_mask:0xc bank_mask:0xf")
    a(f"""
    v_mov_b32 v54, s52
    v_mov_b32 v8, {MISC}
    s_mov_b32 exec_lo, 0
    s_brev_b32 exec_hi, 1
    ds_write_b128 v8, v[52:55]
    s_cmp_lg_u32 s41, 0
    s_cbranch_scc1 L_x_noep
    v_mov_b32 v9, s42
    buffer_store_dword v9, off, s[36:39], 0
    L_x_noep:
    s_mov_b64 exec, -1
    s_waitcnt lgkmcnt(0)
    L_x_nofp:
    s_barrier
    v_mov_b32 v8, {MISC}
    ds_read_b128 v[52:55], v8
    s_waitcnt lgkmcnt(0)
    v_readfirstlane_b32 s52, v54
    v_lshrrev_b32 v9, 2, v54
    v_cmp_eq_u32 vcc, v9, v0
    s_and_saveexec_b64 s[60:61], vcc
    s_cbranch_execz L_x_end
    s_bitcmp1_b32 s52, 0
    s_cselect_b64 vcc, -1, 0
    v_cndmask_b32 v16, v16, v18, vcc
    v_cndmask_b32 v17, v17, v19, vcc
    v_cndmask_b32 v20, v20, v22, vcc
    v_cndmask_b32 v21, v21, v23, vcc
    s_bitcmp1_b32 s52, 1
    s_cselect_b64 vcc, -1, 0
    v_cndmask_b32 v16, v16, v20, vcc
    v_cndmask_b32 v17, v17, v21, vcc
    v_pk_add_f32 v[16:17], v[16:17], v[52:53]
    v_mul_u32_u24 v9, 896, v54
    v_cvt_pk_bf16_f32 v16, v16, v17
    buffer_store_dword v16, v9, s[28:31], s48 offen
    L_x_end:
    """)
    finish("L_x_probe", 15)
    role[0] = "k"
    a("""
    L_kw:
    v_and_b32 v3, 511, v0
    v_lshlrev_b32 v6, 1, v3
    s_lshl_b32 s47, s41, 10
    s_lshl_b32 s48, s41, 2
    s_sub_u32 s45, s40, 8
    v_mov_b32 v16, 0
    v_mov_b32 v17, 0
    v_mov_b32 v18, 0
    v_mov_b32 v19, 0
    s_waitcnt lgkmcnt(0)
    """)
    stamp(1)
    a("s_load_dword s54, s[14:15], s48")
    srd(20, 6, 229376)
    a("buffer_load_short_d16_hi v16, v6, s[20:23], s47 offen")
    srd(24, 8, 229376)
    a("buffer_load_short_d16_hi v17, v6, s[24:27], s47 offen")
    srd(28, 10, 229376)
    a("buffer_load_short_d16_hi v18, v6, s[28:31], s47 offen")
    srd(36, 12, 229376)
    a("buffer_load_short_d16_hi v19, v6, s[36:39], s47 offen")
    O = {0:0, 8:4, 1:9*128, 4:10*128, 2:14*128, 6:16*128, 3:18*128, 5:19*128, 7:20*128}
    GA = 20
    a(f"""
    v_and_b32 v11, 255, v0
    s_lshr_b32 s46, s45, 2
    s_mul_i32 s49, s46, {4*RS}
    v_lshl_add_u32 v{GA+1}, v11, 2, s49
    s_mul_i32 s49, s46, {2*KCS}
    s_add_u32 s49, s49, {KC+32}
    v_lshl_add_u32 v29, v11, 4, s49
    v_cmp_gt_u32 s[56:57], 32, v11
    v_cmp_gt_u32 s[58:59], 64, v11
    v_cmp_gt_u32 s[60:61], 33, v11
    v_cmp_gt_u32 vcc, 0x80, v11
    v_add_u32 v13, 4, v{GA+1}
    v_add_u32 v14, {O[4]}, v{GA+1}
    v_and_b32 v15, 1, v11
    v_lshl_add_u32 v15, v15, 2, v{GA+1}
    v_cndmask_b32 v{GA+5}, v15, v14, vcc
    v_cndmask_b32 v15, v{GA+1}, v14, vcc
    v_cndmask_b32 v14, v13, v14, vcc
    v_add_u32 v12, {O[1]}, v{GA+1}
    v_cndmask_b32 v{GA+2}, v{GA+1}, v12, s[56:57]
    v_add_u32 v12, {O[2]}, v{GA+1}
    v_cndmask_b32 v{GA+3}, v{GA+1}, v12, s[58:59]
    v_add_u32 v12, {O[3]}, v{GA+1}
    v_cndmask_b32 v{GA+4}, v15, v12, s[56:57]
    v_add_u32 v12, {O[5]}, v{GA+1}
    v_cndmask_b32 v{GA+6}, v14, v12, s[56:57]
    v_add_u32 v12, {O[6]}, v{GA+1}
    v_cndmask_b32 v{GA+7}, v13, v12, s[58:59]
    v_add_u32 v12, {O[7]}, v{GA+1}
    v_cndmask_b32 v{GA+8}, v13, v12, s[56:57]
    v_add_u32 v12, {O[7]-4}, v{GA+1}
    v_cndmask_b32 v{GA}, v{GA+1}, v12, s[60:61]
    v_cmp_eq_u32 s[56:57], 0, v11
    s_mul_i32 s49, s45, {RS}
    s_mov_b32 m0, s49
    v_and_b32 v30, 31, v1
    v_lshrrev_b32 v5, 5, v1
    v_mul_u32_u24 v30, 272, v30
    v_lshl_add_u32 v30, v5, 4, v30
    v_add_u32 v30, s49, v30
    """)
    a(f"""
    v_and_b32 v8, 15, v1
    v_lshrrev_b32 v9, 4, v1
    s_and_b32 s50, s45, 3
    s_lshl_b32 s52, s50, 7
    s_mul_i32 s51, s46, {2*KCS}
    s_add_u32 s51, s51, s52
    s_add_u32 s51, s51, {KC+KCS+4}
    v_and_b32 v10, 1, v8
    v_mul_u32_u24 v10, {KCS}, v10
    v_sub_u32 v10, s51, v10
    v_lshrrev_b32 v11, 1, v8
    v_lshl_add_u32 v10, v11, 2, v10
    v_lshl_add_u32 v0, v9, 4, v10
    s_mul_i32 s51, s46, {XCH}
    s_add_u32 s51, s51, s52
    s_add_u32 s51, s51, {XREV+480}
    v_lshlrev_b32 v10, 5, v8
    v_sub_u32 v10, s51, v10
    v_lshl_add_u32 v2, v9, 4, v10
    s_mul_i32 s51, s45, 576
    v_lshlrev_b32 v10, 6, v5
    v_lshl_add_u32 v10, v1, 3, v10
    v_add_u32 v31, s51, v10
    s_barrier
    s_waitcnt lgkmcnt(0)
    s_lshl_b32 s49, s46, 4
    s_sub_u32 s49, 16, s49
    s_lshl_b32 s54, s54, s49
    s_and_b32 s54, s54, 0xffff0000
    v_mov_b32 v3, {LOG2E}
    v_mul_f32 v4, s54, v3
    v_exp_f32 v4, v4
    """)
    stamp(2)
    a("s_waitcnt vmcnt(0)")
    stamp(3, True)
    a(f"""
    v_mul_f32 v16, v16, v3
    v_exp_f32 v16, v16
    v_cvt_pk_bf16_f32 v4, v4, v16
    v_and_b32 v16, 0xffff0000, v4
    v_lshlrev_b32 v4, 16, v4
    v_mul_f32 v16, v16, v4
    v_mul_f32 v17, v17, v4
    v_add_f32 v4, v4, v4
    v_mul_f32 v16, 0xbfb8aa3b, v16
    v_mul_f32 v17, 0.15915494, v17
    v_mul_f32 v18, v18, v4
    v_mul_f32 v19, -v19, v4
    """)
    Z1, W8, ZZ = 32, 14, 36
    a(f"""
    v_fract_f32 v7, v17
    v_mul_f32 v9, 0x43800000, v17
    v_mul_f32 v11, 0xc1000000, v17
    v_exp_f32 v6, v16
    v_mul_f32 v8, 0x43800000, v16
    v_mul_f32 v10, 0x41000000, v16
    v_fract_f32 v9, v9
    v_fract_f32 v11, v11
    v_cos_f32 v{Z1}, v7
    v_sin_f32 v{Z1+1}, v7
    v_exp_f32 v8, v8
    v_cos_f32 v{ZZ}, v9
    v_sin_f32 v{ZZ+1}, v9
    v_exp_f32 v10, v10
    v_cos_f32 v{W8}, v11
    v_sin_f32 v{W8+1}, v11
    v_pk_mul_f32 v[{Z1}:{Z1+1}], v[{Z1}:{Z1+1}], v[6:7] op_sel_hi:[1,0]
    v_pk_mul_f32 v[{ZZ}:{ZZ+1}], v[{ZZ}:{ZZ+1}], v[8:9] op_sel_hi:[1,0]
    v_pk_mul_f32 v[{W8}:{W8+1}], v[{W8}:{W8+1}], v[10:11] op_sel_hi:[1,0]
    """)
    slot_of = {0:0, 256:1, 512:2, 768:3, 1024:4, 1280:5, 1536:6, 1792:7, 2048:8, 1:9, 4:10, 260:11, 516:12, 772:13,
               2:14, 258:15, 6:16, 262:17, 3:18, 5:19, 7:20}
    tcount = [0]
    def putA(h, r):
        s = slot_of[h]; m, e = s >> 1, s & 1
        row = 8*(m >> 2) + 4*e + (m & 3)
        t = 8 + (tcount[0] & 3); tcount[0] += 1
        if r is None: a(f"v_mov_b32 v{t}, 0x3f80")
        else: a(f"v_cvt_pk_bf16_f32 v{t}, v{r}, v{r+1}")
        a(f"ds_write_addtid_b32 v{t} offset:{row*272}")
    z = {1: Z1, 256: ZZ}
    putA(0, None); putA(1, Z1); putA(256, ZZ)
    nxt = [38]
    def prod(h, p, q, keep=True):
        if keep:
            d = nxt[0]; nxt[0] += 2
        else: d = 60 + 2*(tcount[0] & 1)
        cmul(d, z[p], z[q]); z[h] = d; putA(h, d)
    prod(2, 1, 1); prod(512, 256, 256); prod(3, 2, 1); prod(768, 512, 256); prod(4, 2, 2); prod(1024, 512, 512)
    prod(6, 4, 2); prod(5, 4, 1, False); prod(7, 4, 3, False)
    for h, p, q in [(258,256,2), (260,256,4), (262,256,6), (516,512,4), (772,768,4), (1280,1024,256), (1536,1024,512), (1792,1024,768), (2048,1024,1024)]:
        prod(h, p, q, False)
    for ks in range(8):
        a(f"ds_read_b128 v[{64+4*ks}:{67+4*ks}], v30 offset:{32*ks}")
    a("s_mov_b32 s49, 2\nL_k_bchain:")
    for j in range(16):
        t = 8 + (j & 3)
        a(f"v_cvt_pk_bf16_f32 v{t}, v18, v19")
        cmul(18, 18, W8, 12)
        a(f"ds_write_addtid_b32 v{t} offset:{j*272}")
    a(f"""
    s_add_u32 m0, m0, {16*272}
    s_sub_u32 s49, s49, 1
    s_cmp_lg_u32 s49, 0
    s_cbranch_scc1 L_k_bchain
    s_sub_u32 m0, m0, {32*272}
    """)
    stamp(4, True)
    for ks in range(8):
        a(f"ds_read_b128 v[{32+4*ks}:{35+4*ks}], v30 offset:{32*ks}")
    for ks in range(8):
        a(f"s_waitcnt lgkmcnt({7-ks})")
        c = "0" if ks == 0 else "v[96:111]"
        a(f"v_mfma_f32_32x32x16_bf16 v[96:111], v[{64+4*ks}:{67+4*ks}], v[{32+4*ks}:{35+4*ks}], {c}")
    for m in range(11):
        a(f"ds_write_addtid_b32 v{96+m} offset:{m*256}")
    a("s_waitcnt lgkmcnt(0)\ns_barrier")
    stamp(5, True)
    ds = DS(a)
    for i in range(9):
        ds.issue(f"ds_read2st64_b32 v[{32+4*i}:{33+4*i}], v{GA+i} offset0:0 offset1:34", i)
        ds.issue(f"ds_read2st64_b32 v[{34+4*i}:{35+4*i}], v{GA+i} offset0:68 offset1:102", i)
    a("v_add_u32 v3, 1024, v0\nv_add_u32 v4, 2048, v0\nv_add_u32 v5, 3072, v0")
    for i in range(9):
        ds.need(i)
        a(f"v_pk_add_f32 v[{32+4*i}:{33+4*i}], v[{32+4*i}:{33+4*i}], v[{34+4*i}:{35+4*i}]")
        a(f"v_add_f32 v{32+4*i}, v{32+4*i}, v{33+4*i}")
    a("v_cndmask_b32 v32, v32, 0, s[56:57]")
    k = lambda i: 36 + 4*i
    for d in range(4):
        a(f"v_cvt_pk_bf16_f32 v{72+d}, v{k(2*d-1)}, v{k(2*d)}")
    a(f"ds_write_b128 v29, v[72:75] offset:{KCS}")
    for d in range(4):
        a(f"v_cvt_pk_bf16_f32 v{68+d}, v{k(2*d)}, v{k(2*d+1)}")
    a(f"ds_write_b128 v29, v[68:71]")
    a("v_mov_b32 v6, v31")
    a("s_waitcnt lgkmcnt(0)\ns_barrier")
    stamp(6, True)
    AAD = [0, 3, 4, 5]
    A = lambda ri, s: 64 + 32*ri + 4*s
    ds = DS(a)
    for s in range(8):
        for ri in range(2):
            o = 128*(s & 1) + 16*ri
            ds.issue(f"ds_read2_b32 v[{A(ri,s)}:{A(ri,s)+1}], v{AAD[s>>1]} offset0:{o} offset1:{o+1}", ("A", ri, s))
            ds.issue(f"ds_read2_b32 v[{A(ri,s)+2}:{A(ri,s)+3}], v{AAD[s>>1]} offset0:{o+2} offset1:{o+3}", ("A", ri, s))
    a("s_barrier")
    stamp(8, True)
    NS = 7
    slot_reg = lambda i: 12 + 4*i
    accreg = {0: 40, 1: 44, 2: 48, 3: 52, 4: 56, 5: 60, 6: 40, 7: 44}
    uses = []
    ph_order = [
        [(0,0),(1,0),(0,1),(1,1)],
        [(0,0),(1,0),(0,1),(1,1),(0,2),(1,2),(0,3),(1,3),(0,4),(1,4)],
        [(1,4),(0,4),(1,3),(0,3),(1,2),(0,2),(0,1),(1,1),(0,0),(1,0),(0,5),(1,5),(0,6),(1,6),(0,7),(1,7)],
    ]
    for p, lst in enumerate(ph_order):
        for b in lst: uses.append((p, b))
    resident = {}
    free = list(range(NS))
    loaded_for = {}
    def next_use(b, after):
        for i in range(after, len(uses)):
            if uses[i][1] == b: return i
        return 10**9
    pf = [0]
    def prefetch(cur, maxn):
        n = 0
        while pf[0] < len(uses) and n < maxn:
            b = uses[pf[0]][1]
            if b in resident:
                pf[0] += 1; continue
            if not free:
                cand = [(next_use(x, cur), x) for x in resident]
                nu, x = max(cand)
                if nu <= pf[0]: break
                if nu < 10**9 and pf[0] - cur > 2: break
                free.append(resident.pop(x))
            sl = free.pop(0); resident[b] = sl
            ri, u = b
            ds.issue(f"ds_read_b128 v[{slot_reg(sl)}:{slot_reg(sl)+3}], v2 offset:{512*(7-u)+64*ri}", ("B", b))
            pf[0] += 1; n += 1
    prefetch(0, NS)
    started = set()
    pending = []
    def phase_end(p):
        def w():
            for J in PH[p]:
                t = 8 + 2*(J & 1)
                a(f"v_cvt_pk_bf16_f32 v{t}, v{accreg[J]}, v{accreg[J]+1}\nv_cvt_pk_bf16_f32 v{t+1}, v{accreg[J]+2}, v{accreg[J]+3}")
                ds.issue(f"ds_write_b64 v6, v[{t}:{t+1}] offset:{J*8*576}", ("Y", p))
        def bar():
            ds.need(("Y", p)); a("s_barrier")
        return w, bar
    nmf = 0
    for i, (p, b) in enumerate(uses):
        ri, u = b
        assert b in resident
        sl = resident[b]
        ds.need(("B", b))
        for J in PH[p]:
            s = J - u
            if s < 0: continue
            ds.need(("A", ri, s))
            c = f"v[{accreg[J]}:{accreg[J]+3}]" if J in started else "0"
            started.add(J)
            a(f"v_mfma_f32_16x16x32_bf16 v[{accreg[J]}:{accreg[J]+3}], v[{A(ri,s)}:{A(ri,s)+3}], v[{slot_reg(sl)}:{slot_reg(sl)+3}], {c}")
            nmf += 1
            for pe in pending: pe[0] -= 1
            while pending and pending[0][0] <= 0: pending.pop(0)[1]()
        prefetch(i + 1, 1)
        if i + 1 == len(uses) or uses[i+1][0] != p:
            w, bar = phase_end(p)
            if i + 1 == len(uses): w(); bar()
            else: pending += [[2, w], [5, bar]]
    assert nmf == 72 and not pending
    finish("L_k_probe", 10)
    role[0] = "f"
    F_XS, F_PART, F_MISC = 0, 1024, 5120
    G, GT, D, DT = 32, 64, 96, 32
    a("""
    L_ffn:
    s_cmp_ge_u32 s2, 252
    s_cbranch_scc1 L_exit
    s_sub_u32 s41, s2, 224
    v_and_b32 v3, 15, v1
    v_lshrrev_b32 v4, 4, v1
    v_lshrrev_b32 v5, 3, v3
    v_lshl_add_u32 v5, v5, 2, v4
    v_mul_u32_u24 v5, 28672, v5
    v_and_b32 v6, 7, v3
    v_lshl_add_u32 v5, v6, 4, v5
    s_sub_u32 s53, s40, 1
    s_lshr_b32 s56, s53, 1
    s_mul_i32 s44, s56, 229376
    s_lshl_b32 s45, s41, 7
    s_add_u32 s44, s44, s45
    s_add_u32 s45, s44, 7168
    s_add_u32 s46, s44, 14336
    s_add_u32 s47, s44, 21504
    s_and_b32 s57, s53, 1
    s_waitcnt lgkmcnt(0)
    """)
    stamp(1)
    a("""
    s_load_dword s42, s[34:35], 0
    s_cselect_b64 s[8:9], s[24:25], s[22:23]
    s_mov_b32 s10, 1605632
    s_mov_b32 s11, 0x20000
    s_cmp_ge_u32 s53, 14
    s_cbranch_scc1 L_f_nogu
    """)
    for r in range(8):
        a(f"buffer_load_dwordx4 v[{G+4*r}:{G+4*r+3}], v5, s[8:11], s{44+(r>>1)} offen offset:{3584*(r&1)}")
    a("L_f_nogu:")
    srd(12, 26, 1605632); srd(36, 34, WS_SIZE); srd(4, 4, 1835008)
    a(f"""
    s_and_b32 s50, s40, 3
    s_bfe_u32 s51, s40, 0x10002
    s_lshl_b32 s48, s50, 4
    v_add_u32 v7, s48, v3
    v_mul_u32_u24 v8, 7168, v4
    v_cmp_gt_u32 vcc, 56, v7
    v_lshl_add_u32 v8, v7, 4, v8
    v_bfrev_b32 v9, -2
    v_lshl_add_u32 v10, v7, 2, v4
    v_lshlrev_b32 v10, 4, v10
    v_cndmask_b32 v8, v9, v8, vcc
    v_cndmask_b32 v10, v9, v10, vcc
    s_lshl_b32 s52, s41, 1
    s_add_u32 s52, s52, s51
    s_mul_i32 s48, s52, 28672
    s_add_u32 s49, s48, 3584
    s_mul_i32 s52, s52, 3584
    s_add_u32 s52, s52, {WS_FFN}
    s_cmp_lt_u32 s40, 8
    s_cbranch_scc1 L_f_nod
    """)
    for r in range(8):
        a(f"buffer_load_dwordx4 v[{D+4*r}:{D+4*r+3}], v8, s[12:15], s{48+(r>>2)} offen offset:{896*(r&3)}")
    a(f"""
    L_f_nod:
    s_mov_b32 s54, 0x05040100
    s_mov_b32 s55, 0x07060302
    v_and_b32 v14, 1, v3
    v_lshlrev_b32 v14, 6, v14
    v_lshl_add_u32 v14, v4, 4, v14
    s_lshl_b32 s44, s56, 7
    v_add_u32 v14, s44, v14
    v_lshl_add_u32 v15, v6, 2, v4
    v_lshlrev_b32 v15, 4, v15
    s_lshl_b32 s44, s56, 9
    s_lshl_b32 s45, s57, 2
    s_add_u32 s44, s44, s45
    s_add_u32 s44, s44, {F_PART}
    v_add_u32 v15, s44, v15
    v_lshl_add_u32 v16, v4, 3, v6
    v_lshlrev_b32 v16, 3, v16
    s_lshl_b32 s44, s51, 8
    v_add_u32 v16, s44, v16
    v_mov_b32 v17, {F_MISC}
    s_waitcnt lgkmcnt(0)
    """)
    next_tag()
    def transp(src, dst):
        for rp in range(4):
            for d in range(4):
                x, y = src + 8*rp + d, src + 8*rp + 4 + d
                a(f"v_perm_b32 v{dst+8*d+rp}, v{y}, v{x}, s54\nv_perm_b32 v{dst+8*d+4+rp}, v{y}, v{x}, s55")
    a("""
    s_cmp_eq_u32 s40, 0
    s_cbranch_scc1 L_f_router
    s_cmp_lt_u32 s40, 8
    s_cbranch_scc1 L_f_w0
    s_waitcnt vmcnt(8)
    s_branch L_f_w0j
    L_f_w0:
    s_waitcnt vmcnt(0)
    L_f_w0j:
    """)
    transp(G, GT)
    stamp(2)
    a("s_cmp_lt_u32 s40, 8\ns_cbranch_scc1 L_f_join\ns_waitcnt vmcnt(0)")
    transp(D, DT)
    stamp(3)
    a("s_branch L_f_join")
    a(f"""
    L_f_router:
    s_setprio 3
    v_lshlrev_b32 v18, 4, v1
    s_mov_b32 s44, {WS_KEY}
    s_mov_b32 s45, {WS_KEY+4096}
    s_mov_b32 s46, 0
    s_mov_b32 s47, {WS_KEY+8192-16}
    L_f_kpre:
    buffer_load_dwordx4 v[32:35], off, s[36:39], s47 sc1
    s_add_u32 s46, s46, 1
    s_cmp_ge_u32 s46, {SPIN_MAX}
    s_cbranch_scc1 L_f_kpoll
    s_waitcnt vmcnt(0)
    v_cmp_ne_u32 vcc, s42, v35
    s_cbranch_vccnz L_f_kpre
    """)
    stamp(2)
    a("L_f_kpoll:")
    for i in range(8):
        a(f"buffer_load_dwordx4 v[{32+4*i}:{35+4*i}], v18, s[36:39], s{44+(i>>2)} offen offset:{1024*(i&3)} sc1")
    a("v_mov_b32 v19, 0\nv_mov_b32 v20, 0")
    for i in range(8):
        a(f"s_waitcnt vmcnt({7-i})")
        a(f"v_bitop3_b32 v19, v{33+4*i}, s42, v19 bitop3:0xbe")
        a(f"v_max3_u32 v20, v{32+4*i}, v{34+4*i}, v20")
        a(f"v_bitop3_b32 v19, v{35+4*i}, s42, v19 bitop3:0xbe")
    a(f"""
    v_cmp_ne_u32 vcc, 0, v19
    s_cbranch_vccz L_f_kpolled
    s_add_u32 s46, s46, 1
    s_cmp_ge_u32 s46, {SPIN_MAX}
    s_cbranch_scc1 L_f_kpolled
    s_mov_b64 exec, vcc
    s_branch L_f_kpoll
    L_f_kpolled:
    s_mov_b64 exec, -1
    """)
    stamp(3)
    for sh in (1, 2, 4, 8):
        a(f"v_max_u32_dpp v20, v20, v20 row_shr:{sh} row_mask:0xf bank_mask:0xf")
    a("v_max_u32_dpp v20, v20, v20 row_bcast:15 row_mask:0xa bank_mask:0xf")
    a("v_max_u32_dpp v20, v20, v20 row_bcast:31 row_mask:0xc bank_mask:0xf")
    a(f"""
    v_readlane_b32 s44, v20, 63
    s_mov_b32 exec_hi, 0xffffff
    s_and_b32 s45, s44, 0x7ff
    s_sub_u32 s45, 2047, s45
    s_mul_i32 s46, s45, 896
    buffer_load_dwordx4 v[32:35], v18, s[4:7], s46 offen
    s_lshr_b32 s47, s45, 2
    s_lshl_b32 s47, s47, 4
    s_bfe_u32 s56, s45, 0x10001
    s_lshl_b32 s56, s56, 13
    s_add_u32 s47, s47, s56
    s_add_u32 s47, s47, {WS_STAT}
    s_mov_b32 s46, 0
    L_f_spoll:
    buffer_load_dwordx4 v[36:39], off, s[36:39], s47 sc1
    s_ashr_i32 s56, s44, 31
    s_not_b32 s56, s56
    s_or_b32 s56, s56, 0x80000000
    s_xor_b32 s56, s56, s44
    s_and_b32 s56, s56, 0xffff0000
    v_mov_b32 v21, 0xbfb8aa3b
    v_mul_f32 v21, s56, v21
    v_exp_f32 v21, v21
    v_mov_b32 v20, s45
    v_add_f32 v21, 1.0, v21
    v_rcp_f32 v21, v21
    s_add_u32 s46, s46, 1
    s_cmp_ge_u32 s46, {SPIN_MAX}
    s_cbranch_scc1 L_f_spolled
    s_waitcnt vmcnt(0)
    v_cmp_ne_u32 vcc, s42, v39
    s_cbranch_vccnz L_f_spoll
    L_f_spolled:
    s_waitcnt vmcnt(0)
    ds_write_b64 v17, v[20:21]
    """)
    stamp(4)
    a(f"""
    s_bitcmp1_b32 s45, 0
    s_cselect_b64 vcc, -1, 0
    v_lshlrev_b32 v40, 16, v38
    v_and_b32 v41, 0xffff0000, v38
    v_cndmask_b32 v36, v36, v37, vcc
    v_cndmask_b32 v37, v40, v41, vcc
    """)
    for d in range(4):
        a(f"v_lshlrev_b32 v{40+2*d}, 16, v{32+d}\nv_and_b32 v{41+2*d}, 0xffff0000, v{32+d}")
    for d in range(4):
        a(f"v_pk_add_f32 v[{40+2*d}:{41+2*d}], v[{40+2*d}:{41+2*d}], v[36:37] op_sel:[0,1] op_sel_hi:[1,1] neg_lo:[0,1] neg_hi:[0,1]")
    for d in range(4):
        a(f"v_pk_mul_f32 v[{40+2*d}:{41+2*d}], v[{40+2*d}:{41+2*d}], v[36:37] op_sel:[0,0] op_sel_hi:[1,0]")
    for d in range(4):
        a(f"v_cvt_pk_bf16_f32 v{32+d}, v{40+2*d}, v{41+2*d}")
    a(f"""
    ds_write_b128 v18, v[32:35] offset:{F_XS}
    s_mov_b64 exec, -1
    s_waitcnt lgkmcnt(0)
    L_f_join:
    s_barrier
    """)
    stamp(5, True)
    a(f"""
    s_cmp_ge_u32 s53, 14
    s_cbranch_scc1 L_f_nogu2
    ds_read_b128 v[20:23], v14 offset:{F_XS}
    s_waitcnt lgkmcnt(0)
    """)
    R = lambda c: 96 + 4*c
    for c in range(8):
        a(f"v_mfma_f32_16x16x32_bf16 v[{R(c)}:{R(c)+3}], v[20:23], v[{GT+4*c}:{GT+4*c+3}], 0")
    for c in range(8):
        a(f"v_add_f32_dpp v{4+(c&1)}, v{R(c)+1}, v{R(c)} row_ror:8 row_mask:{hex(1<<(c>>1))} bank_mask:0xf")
    a(f"""
    s_mov_b32 exec_lo, 0x00ff00ff
    s_mov_b32 exec_hi, 0x00ff00ff
    ds_write2_b32 v15, v4, v5 offset0:0 offset1:2
    s_mov_b64 exec, -1
    s_waitcnt lgkmcnt(0)
    L_f_nogu2:
    s_barrier
    s_cmp_lt_u32 s40, 8
    s_cbranch_scc1 L_f_end
    """)
    stamp(6, True)
    for w in range(7):
        a(f"ds_read_b64 v[{64+2*w}:{65+2*w}], v16 offset:{F_PART+512*w}")
    a("""
    ds_read_b64 v[30:31], v17
    v_mov_b32 v7, s42
    s_waitcnt lgkmcnt(6)
    v_pk_add_f32 v[64:65], v[64:65], v[66:67]
    s_waitcnt lgkmcnt(4)
    v_pk_add_f32 v[68:69], v[68:69], v[70:71]
    s_waitcnt lgkmcnt(2)
    v_pk_add_f32 v[72:73], v[72:73], v[74:75]
    v_pk_add_f32 v[64:65], v[64:65], v[68:69]
    s_waitcnt lgkmcnt(1)
    v_pk_add_f32 v[72:73], v[72:73], v[76:77]
    v_pk_add_f32 v[64:65], v[64:65], v[72:73]
    v_mul_f32 v66, 0xbfb8aa3b, v64
    v_exp_f32 v66, v66
    v_mul_f32 v64, v64, v65
    v_add_f32 v66, 1.0, v66
    v_rcp_f32 v66, v66
    s_waitcnt lgkmcnt(0)
    v_mul_f32 v64, v64, v66
    v_mov_b32 v6, v30
    v_mov_b32_dpp v65, v64 quad_perm:[1,1,3,3] row_mask:0xf bank_mask:0xf
    v_cvt_pk_bf16_f32 v64, v64, v65
    """)
    for q in range(4):
        a(f"v_mov_b32_dpp v{20+q}, v64 row_newbcast:{2*q} row_mask:0xf bank_mask:0xf")
    for c in range(8):
        a(f"v_mfma_f32_16x16x32_bf16 v[{R(c)}:{R(c)+3}], v[20:23], v[{DT+4*c}:{DT+4*c+3}], 0")
    for c in range(8):
        a(f"v_mul_f32_dpp v{4+(c&1)}, v{R(c)}, v31 quad_perm:[0,1,2,3] row_mask:{hex(1<<(c>>1))} bank_mask:0xf")
    a("buffer_store_dwordx4 v[4:7], v10, s[36:39], s52 offen sc1")
    stamp(7)
    a("L_f_end:")
    finish("L_f_probe", 9)
    a("L_exit:\ns_endpgm")
    a.pad(verbose=bool(os.environ.get("PADV")))
    hdr = open(os.path.join(os.path.dirname(__file__), "header.txt")).read()
    src = hdr + f"""; @launch grid=(252,1,1) block=(1024,1,1) lds={LDS_BYTES}
.amdgcn_target "amdgcn-amd-amdhsa--gfx950"
.text
.globl {KN}
.p2align 8
.type {KN},@function
""" + a.text() + f""".section .rodata,"a"
.p2align 6
.amdhsa_kernel {KN}
  .amdhsa_next_free_vgpr 128
  .amdhsa_next_free_sgpr {100 if (stamps or probe) else 64}
  .amdhsa_accum_offset 128
  .amdhsa_group_segment_fixed_size 0
  .amdhsa_kernarg_size 120
  .amdhsa_user_sgpr_count 2
  .amdhsa_user_sgpr_kernarg_segment_ptr 1
  .amdhsa_system_sgpr_workgroup_id_x 1
.end_amdhsa_kernel
"""
    return src

if __name__ == "__main__":
    out = sys.argv[1]
    opts = sys.argv[2:]
    probe = None
    for o in opts:
        if o.startswith("probe="):
            r, k, lo, hi = o[6:].split(",")
            probe = (r, int(k), (int(lo), int(hi)))
    open(out, "w").write(gen(stamps="stamps" in opts, probe=probe, opt=opts))
```

```python
import sys, os
sys.path.insert(0, os.path.dirname(__file__))
from asmlib import Asm
NAME = "parallel_sum__ssm_conv_s4d__moe_arch_mod__prompt"
KN = NAME + "_kernel"

WS_STAT = 0x1000
WS_KEY  = 0x5000
WS_FFN  = 0x8000
WS_XIN  = 0x40000
WS_DBG  = 0x800000
WS_SIZE = 0x1000000
RS   = 8704
XREV = 8*RS
XCH  = 4576
KC   = XREV + 2*XCH + 64
KCS  = 4160
MISC = KC + 4*KCS
LDS_BYTES = MISC + 64
LOG2E = 0x3fb8aa3b
SPIN_MAX = 200000
OOB = 0x7fffffff

class DS:
    def __init__(self, a): self.a = a; self.q = []; self.done = 0
    def issue(self, text, tag=None):
        self.a(text); self.q.append(tag)
    def need(self, tag):
        idx = max((i for i, t in enumerate(self.q) if t == tag), default=-1)
        if idx < self.done: return
        n = len(self.q) - 1 - idx
        n = min(n, 15)
        self.a(f"s_waitcnt lgkmcnt({n})")
        self.done = len(self.q) - n

def gen(stamps=False, probe=None, opt=()):
    a = Asm()
    role = ["c"]
    def stamp(k, wait=False):
        if stamps or (probe and (k == 0 or (probe[0] == role[0] and probe[1] == k))):
            a(f"{'s_memtime' if 'konly' in opt else 's_memrealtime'} s[{64+2*k}:{65+2*k}]")
            if wait: a("s_waitcnt lgkmcnt(0)")
    def finish(lbl, n):
        if stamps or probe:
            a("s_waitcnt vmcnt(0)"); stamp(n - 1)
        if stamps:
            a("s_waitcnt lgkmcnt(0)")
            a(f"s_lshl_b32 s62, s2, 4\ns_add_u32 s62, s62, s40\ns_lshl_b32 s62, s62, 6\ns_add_u32 s62, s62, {WS_DBG}")
            a(f"s_mov_b32 s56, s34\ns_mov_b32 s57, s35\ns_mov_b32 s58, {WS_SIZE}\ns_mov_b32 s59, 0x20000")
            a("s_mov_b64 exec, 1\nv_mov_b32 v1, 0")
            for k in range(n):
                a(f"v_mov_b32 v2, s{64+2*k}\nbuffer_store_dword v2, v1, s[56:59], s62 offen offset:{4*k}")
        if probe and (role[0] != "k" or probe[0] == "k"):
            if role[0] == "k": a("s_barrier")
            a("s_waitcnt vmcnt(0) lgkmcnt(0)\ns_add_u32 s96, s64, 3000")
            if probe[0] == role[0]:
                lo, hi = probe[2]
                a(f"s_cmp_lt_u32 s40, {lo}\ns_cbranch_scc1 {lbl}\ns_cmp_gt_u32 s40, {hi}\ns_cbranch_scc1 {lbl}")
                a(f"s_sub_u32 s97, s{64+2*probe[1]}, s64\ns_lshl_b32 s97, s97, 2\ns_add_u32 s96, s96, s97")
            a(f"{lbl}:\ns_memrealtime s[98:99]\ns_waitcnt lgkmcnt(0)\ns_sub_u32 s98, s98, s96\ns_cmp_lt_i32 s98, 0\ns_cbranch_scc1 {lbl}")
        a("s_endpgm")
    def srd(base, ptr, size):
        if ptr != base: a(f"s_mov_b64 s[{base}:{base+1}], s[{ptr}:{ptr+1}]")
        a(f"s_mov_b32 s{base+2}, {size}\ns_mov_b32 s{base+3}, 0x20000")
    def cmul(d, x, y, t=None):
        t = d if t is None else t
        a(f"v_pk_mul_f32 v[{t}:{t+1}], v[{x}:{x+1}], v[{y}:{y+1}] op_sel_hi:[0,1]")
        a(f"v_pk_fma_f32 v[{d}:{d+1}], v[{x}:{x+1}], v[{y}:{y+1}], v[{t}:{t+1}] op_sel:[1,1,0] op_sel_hi:[1,0,1] neg_lo:[0,1,0]")
    def next_tag():
        a("s_mul_i32 s42, s42, 0x9e3779b1\ns_add_u32 s42, s42, 0x7f4a7c15")
    a(f"{KN}:")
    stamp(0)
    a(f"""
    s_load_dwordx16 s[4:19], s[0:1], 0
    s_load_dwordx8 s[20:27], s[0:1], 64
    s_load_dwordx2 s[28:29], s[0:1], 96
    s_load_dwordx2 s[34:35], s[0:1], 112
    v_lshrrev_b32 v2, 6, v0
    v_and_b32 v1, 63, v0
    s_and_b32 s43, s2, 7
    v_readfirstlane_b32 s40, v2
    s_lshr_b32 s44, s2, 3
    s_cmp_ge_u32 s44, 28
    s_cbranch_scc1 L_ffn
    s_mul_i32 s41, s43, 28
    s_add_u32 s41, s41, s44
    s_cmp_ge_u32 s40, 8
    s_cbranch_scc1 L_kw
    """)
    if "konly" in opt: a("s_endpgm")
    a(f"""
    s_mul_i32 s45, s40, 28
    s_add_u32 s45, s45, s44
    s_lshl_b32 s46, s43, 7
    s_add_u32 s47, s45, s46
    s_mul_i32 s46, s47, 1792
    v_and_b32 v3, 31, v1
    v_lshrrev_b32 v5, 5, v1
    v_cmp_gt_u32 vcc, 28, v3
    v_lshlrev_b32 v3, 5, v3
    v_mul_u32_u24 v4, 896, v5
    v_add_u32 v4, v4, v3
    v_bfrev_b32 v6, -2
    v_cndmask_b32 v4, v6, v4, vcc
    """)
    a("""
    v_and_b32 v7, 3, v1
    v_bfe_u32 v8, v1, 4, 1
    v_lshl_add_u32 v7, v8, 2, v7
    v_bfe_u32 v8, v1, 2, 2
    v_lshl_add_u32 v8, v5, 2, v8
    v_and_b32 v9, 3, v2
    v_lshl_add_u32 v8, v9, 3, v8
    v_mul_u32_u24 v9, 3584, v7
    v_lshl_add_u32 v9, v8, 2, v9
    s_mul_i32 s49, s44, 37
    s_lshr_b32 s49, s49, 8
    s_mul_i32 s50, s49, 7
    s_sub_u32 s50, s44, s50
    s_lshl_b32 s51, s43, 2
    s_add_u32 s49, s49, s51
    s_mul_i32 s51, s49, 57344
    s_lshl_b32 s52, s50, 7
    s_add_u32 s51, s51, s52
    s_add_u32 s52, s51, 28672
    s_lshl_b32 s48, s41, 2
    """)
    stamp(12)
    a("s_waitcnt lgkmcnt(0)")
    stamp(1)
    a("s_load_dword s42, s[34:35], 0")
    a("s_load_dword s55, s[16:17], s48")
    srd(4, 4, 1835008)
    a("s_cmp_ge_u32 s45, 128\ns_cbranch_scc1 L_x_nost0")
    a("""
    buffer_load_dwordx4 v[32:35], v4, s[4:7], s46 offen
    buffer_load_dwordx4 v[36:39], v4, s[4:7], s46 offen offset:16
    """)
    srd(8, 20, 896)
    a("""
    buffer_load_dwordx4 v[40:43], v3, s[8:11], 0 offen
    buffer_load_dwordx4 v[44:47], v3, s[8:11], 0 offen offset:16
    L_x_nost0:
    s_cmp_lt_u32 s40, 4
    s_cbranch_scc1 L_x_notile0
    """)
    for k, r in enumerate([64, 65, 66, 72]):
        a(f"buffer_load_dword v{r}, v9, s[4:7], s51 offen offset:{k*896}")
    for k, r in enumerate([68, 69, 70, 73]):
        a(f"buffer_load_dword v{r}, v9, s[4:7], s52 offen offset:{k*896}")
    a("L_x_notile0:")
    srd(36, 34, WS_SIZE); srd(28, 28, 1835008)
    a(f"""
    v_mul_u32_u24 v10, 12288, v8
    v_lshl_add_u32 v10, v7, 4, v10
    s_mul_i32 s53, s50, 393216
    s_mul_i32 s49, s49, 384
    s_add_u32 s53, s53, s49
    s_add_u32 s53, s53, {WS_XIN}
    v_mov_b32 v48, 0
    v_mov_b32 v49, 0
    v_mov_b32 v50, 0
    v_mov_b32 v51, 0
    v_lshrrev_b32 v11, 4, v0
    v_mul_u32_u24 v11, 384, v11
    v_and_b32 v12, 7, v0
    v_lshl_add_u32 v12, v12, 4, v11
    v_and_b32 v13, 15, v0
    v_lshl_add_u32 v11, v13, 4, v11
    v_lshlrev_b32 v13, 4, v0
    v_and_b32 v7, 8, v0
    v_cmp_ne_u32 s[56:57], 0, v7
    v_lshlrev_b32 v7, 3, v0
    v_sub_u32 v7, {XREV+4088}, v7
    v_mul_u32_u24 v6, 3584, v0
    v_and_b32 v8, 3, v1
    v_lshrrev_b32 v9, 2, v1
    v_lshl_add_u32 v24, v8, 4, v9
    v_lshrrev_b32 v25, 1, v8
    v_lshl_add_u32 v24, v25, 3, v24
    s_mul_i32 s51, s40, {8*576}
    v_lshl_add_u32 v24, v24, 3, s51
    """)
    a(f"""
    s_lshl_b32 s51, s44, 4
    v_add_u32 v9, s51, v9
    v_lshl_add_u32 v8, v8, 3, s43
    s_movk_i32 s52, 128
    s_cmp_eq_u32 s40, 7
    s_cselect_b32 s51, s52, 3584
    s_cselect_b32 s52, 57344, s52
    s_cselect_b64 s[12:13], s[26:27], s[24:25]
    s_cmp_eq_u32 s40, 5
    s_cselect_b64 s[12:13], s[22:23], s[12:13]
    s_mov_b32 s14, 1605632
    s_mov_b32 s15, 0x20000
    v_cmp_gt_u32 vcc, 28, v8
    v_mul_u32_u24 v9, s51, v9
    v_mul_u32_u24 v8, s52, v8
    v_add_u32 v25, v8, v9
    v_bfrev_b32 v8, -2
    v_cndmask_b32 v25, v8, v25, vcc
    """)
    a(f"""
    s_mul_i32 s51, s40, {XCH}
    s_add_u32 s51, s51, {XREV+4096}
    v_lshl_add_u32 v8, v1, 4, s51
    s_mov_b32 s52, 30
    s_cmp_lt_u32 s40, 2
    s_cbranch_scc1 L_x_pad
    s_cmp_lg_u32 s40, 2
    s_cbranch_scc1 L_x_nopad
    v_lshrrev_b32 v8, 1, v1
    v_mul_u32_u24 v8, {KCS-32}, v8
    v_lshl_add_u32 v8, v1, 4, v8
    v_add_u32 v8, {KC}, v8
    s_mov_b32 s52, 8
    L_x_pad:
    v_cmp_gt_u32 vcc, s52, v1
    s_and_saveexec_b64 s[60:61], vcc
    ds_write_b128 v8, v[48:51]
    s_mov_b64 exec, s[60:61]
    L_x_nopad:
    s_and_b32 s49, s47, 1
    s_lshl_b32 s49, s49, 13
    s_lshr_b32 s50, s47, 1
    s_lshl_b32 s50, s50, 4
    s_add_u32 s58, s49, s50
    s_add_u32 s58, s58, {WS_STAT}
    s_lshl_b32 s59, s47, 3
    s_add_u32 s59, s59, {WS_KEY}
    s_lshl_b32 s49, s47, 1
    s_sub_u32 s49, 2047, s49
    v_sub_u32 v58, s49, v5
    s_mov_b32 s50, 0xffff0000
    s_mov_b32 s49, 0x3f803f80
    s_waitcnt lgkmcnt(0)
    """)
    next_tag()
    a("s_barrier")
    stamp(2)
    a("""
    v_mov_b32 v55, s42
    v_mov_b32 v57, s42
    v_mov_b32 v67, s42
    v_mov_b32 v71, s42
    v_mov_b32 v75, s42
    s_cmp_ge_u32 s45, 128
    s_cbranch_scc1 L_x_nost1
    s_cmp_lt_u32 s40, 4
    s_cbranch_scc1 L_x_w4
    s_waitcnt vmcnt(8)
    s_branch L_x_w4j
    L_x_w4:
    s_waitcnt vmcnt(0)
    L_x_w4j:
    """)
    stamp(3)
    for i in range(8):
        a(f"""
        v_dot2c_f32_bf16 v48, s49, v{32+i}
        v_dot2c_f32_bf16 v49, v{32+i}, v{32+i}
        v_dot2c_f32_bf16 v50, v{32+i}, v{40+i}
        v_dot2c_f32_bf16 v51, s49, v{40+i}
        """)
    for sh in (1, 2, 4, 8):
        for r in (48, 49, 50, 51):
            a(f"v_add_f32_dpp v{r}, v{r}, v{r} row_shr:{sh} row_mask:0xf bank_mask:0xf bound_ctrl:0")
    for r in (48, 49, 50, 51):
        a(f"v_add_f32_dpp v{r}, v{r}, v{r} row_bcast:15 row_mask:0xa bank_mask:0xf")
    a(f"""
    v_mul_f32 v48, 0x3b124925, v48
    v_mul_f32 v49, 0x3b124925, v49
    v_fma_f32 v49, -v48, v48, v49
    v_max_f32 v49, 0, v49
    v_cvt_pk_bf16_f32 v52, v49, v48
    v_lshlrev_b32 v49, 16, v52
    v_add_f32 v49, 0x3727c5ac, v49
    v_cvt_pk_bf16_f32 v49, v49, v49
    v_lshlrev_b32 v49, 16, v49
    v_sqrt_f32 v49, v49
    v_and_b32 v54, 0xffff0000, v52
    v_cvt_pk_bf16_f32 v49, v49, v49
    v_lshlrev_b32 v49, 16, v49
    v_rcp_f32 v53, v49
    v_fma_f32 v50, -v54, v51, v50
    v_mov_b32_dpp v48, v54 row_bcast:31 row_mask:0xc bank_mask:0xf
    v_mul_f32 v50, v50, v53
    v_mov_b32_dpp v52, v53 row_bcast:31 row_mask:0xc bank_mask:0xf
    v_lshrrev_b32 v48, 16, v48
    v_cvt_pk_bf16_f32 v50, v50, v50
    v_or_b32 v54, v54, v48
    s_mov_b32 exec_lo, 0
    s_brev_b32 exec_hi, 1
    buffer_store_dwordx4 v[52:55], off, s[36:39], s58 sc1
    s_mov_b64 exec, -1
    v_ashrrev_i32 v51, 31, v50
    v_or_b32 v51, 0x80000000, v51
    v_xor_b32 v50, v50, v51
    v_and_or_b32 v56, v50, s50, v58
    v_max_u32_dpp v56, v56, v56 row_bcast:31 row_mask:0xc bank_mask:0xf
    s_mov_b32 exec_lo, 0
    s_brev_b32 exec_hi, 1
    buffer_store_dwordx2 v[56:57], off, s[36:39], s59 sc1
    s_mov_b64 exec, -1
    s_waitcnt vmcnt(2)
    s_branch L_x_st1j
    L_x_nost1:
    s_waitcnt vmcnt(0)
    L_x_st1j:
    s_cmp_lt_u32 s40, 4
    s_cbranch_scc1 L_x_notile1
    buffer_store_dwordx4 v[64:67], v10, s[36:39], s53 offen sc1
    buffer_store_dwordx4 v[68:71], v10, s[36:39], s53 offen offset:128 sc1
    buffer_store_dwordx4 v[72:75], v10, s[36:39], s53 offen offset:256 sc1
    """)
    if "nopf" not in opt:
        a("s_cmp_eq_u32 s40, 4\ns_cbranch_scc1 L_x_notile1")
        a("buffer_load_dword v26, v25, s[12:15], 0 offen")
        if "pf2" in opt: a("buffer_load_dword v27, v25, s[12:15], 0 offen offset:64")
    a("L_x_notile1:")
    stamp(4)
    a(f"""
    s_lshl_b32 s49, s55, 16
    s_and_b32 s50, s55, 0xffff0000
    v_mov_b32 v14, 1.0
    v_add_f32 v15, s50, v14
    v_add_f32 v14, s49, v14
    s_mul_i32 s51, s41, 12288
    s_add_u32 s51, s51, {WS_XIN}
    s_mov_b32 s52, {WS_STAT}
    s_mov_b32 s53, {WS_STAT+8192}
    s_mov_b32 s49, 0
    s_barrier
    """)
    stamp(5)
    def poll_loads():
        a("""
        buffer_load_dwordx4 v[112:115], v11, s[36:39], s51 offen sc1
        buffer_load_dwordx4 v[116:119], v12, s[36:39], s51 offen offset:256 sc1
        buffer_load_dwordx4 v[120:123], v13, s[36:39], s52 offen sc1
        buffer_load_dwordx4 v[124:127], v13, s[36:39], s53 offen sc1
        """)
    poll_loads()
    a("s_barrier")
    stamp(6)
    a(f"""
    L_x_poll:
    s_waitcnt vmcnt(0)
    v_xor_b32 v8, s42, v115
    v_bitop3_b32 v8, v119, s42, v8 bitop3:0xbe
    v_bitop3_b32 v8, v123, s42, v8 bitop3:0xbe
    v_bitop3_b32 v8, v127, s42, v8 bitop3:0xbe
    v_cmp_ne_u32 vcc, 0, v8
    s_cbranch_vccz L_x_polled
    s_add_u32 s49, s49, 1
    s_cmp_ge_u32 s49, {SPIN_MAX}
    s_cbranch_scc1 L_x_polled
    s_mov_b64 exec, vcc
    s_sleep 1
    """)
    poll_loads()
    a("""
    s_branch L_x_poll
    L_x_polled:
    s_mov_b64 exec, -1
    """)
    stamp(7)
    a("v_cndmask_b32 v115, v116, v117, s[56:57]")
    a("""
    v_lshlrev_b32 v8, 16, v122
    v_and_b32 v9, 0xffff0000, v122
    v_lshlrev_b32 v10, 16, v126
    v_and_b32 v11, 0xffff0000, v126
    """)
    for r in range(4):
        a(f"v_lshlrev_b32 v{16+2*r}, 16, v{112+r}\nv_and_b32 v{17+2*r}, 0xffff0000, v{112+r}")
    for r in range(4):
        e = r & 1; mm = 8 + 2*(r >> 1)
        a(f"v_pk_add_f32 v[{32+2*r}:{33+2*r}], v[{16+2*r}:{17+2*r}], v[{mm}:{mm+1}] op_sel:[0,{e}] op_sel_hi:[1,{e}] neg_lo:[0,1] neg_hi:[0,1]")
    for r in range(4):
        e = r & 1; rs = 120 + 4*(r >> 1)
        a(f"v_pk_mul_f32 v[{32+2*r}:{33+2*r}], v[{32+2*r}:{33+2*r}], v[{rs}:{rs+1}] op_sel:[0,{e}] op_sel_hi:[1,{e}]")
    a(f"""
    v_cvt_pk_bf16_f32 v40, v38, v36
    v_cvt_pk_bf16_f32 v41, v34, v32
    ds_write_b64 v7, v[40:41]
    v_cvt_pk_bf16_f32 v42, v39, v37
    v_cvt_pk_bf16_f32 v43, v35, v33
    ds_write_b64 v7, v[42:43] offset:{XCH}
    s_waitcnt lgkmcnt(0)
    s_barrier
    """)
    stamp(8)
    for r in range(4):
        a(f"v_pk_fma_f32 v[{16+2*r}:{17+2*r}], v[{32+2*r}:{33+2*r}], v[14:15], v[{16+2*r}:{17+2*r}]")
    PH = [[0, 1], [2, 3, 4], [5, 6, 7]]
    a(f"""
    s_mov_b32 s49, 0x3f80
    s_mov_b32 s50, 0x3f800000
    v_mul_u32_u24 v8, 3584, v1
    s_lshl_b32 s51, s41, 4
    s_add_u32 s51, s51, {WS_FFN}
    v_mov_b32 v52, 0
    v_mov_b32 v53, 0
    s_barrier
    s_cmp_lt_u32 s40, {PH[1][0]}
    s_cbranch_scc1 L_x_epi
    s_barrier
    s_cmp_lt_u32 s40, {PH[2][0]}
    s_cbranch_scc1 L_x_epi
    s_barrier
    L_x_epi:
    """)
    stamp(9, True)
    order = [0, 4, 1, 5, 2, 6, 3, 7]
    for i, kw in enumerate(order):
        a(f"ds_read_b64 v[{32+2*i}:{33+2*i}], v24 offset:{kw*576}")
    for hh in range(4):
        a(f"s_waitcnt lgkmcnt({6-2*hh})")
        for r in range(4):
            for ch in range(2):
                a(f"v_dot2c_f32_bf16 v{16+2*r+ch}, s{49+(r&1)}, v{32+4*hh+2*ch+(r>>1)}")
    for r in range(4):
        a(f"v_cvt_pk_bf16_f32 v{48+r}, v{16+2*r}, v{17+2*r}")
        a(f"buffer_store_dword v{48+r}, v6, s[28:31], s48 offen offset:{896*r}")
    stamp(10)
    a(f"""
    s_cmp_ge_u32 s40, {PH[2][0]}
    s_cbranch_scc1 L_x_nofp
    s_barrier
    s_cmp_ge_u32 s40, {PH[1][0]}
    s_cbranch_scc1 L_x_nofp
    s_barrier
    s_cmp_lg_u32 s40, 0
    s_cbranch_scc1 L_x_nofp
    s_mov_b32 s49, 0
    s_mov_b32 exec_hi, 0xffffff
    L_x_fpoll:
    buffer_load_dwordx4 v[52:55], v8, s[36:39], s51 offen sc1
    s_waitcnt vmcnt(0)
    v_cmp_ne_u32 vcc, s42, v55
    s_cbranch_vccz L_x_fpolled
    s_add_u32 s49, s49, 1
    s_cmp_ge_u32 s49, {SPIN_MAX}
    s_cbranch_scc1 L_x_fpolled
    s_mov_b64 exec, vcc
    s_sleep 1
    s_branch L_x_fpoll
    L_x_fpolled:
    s_mov_b64 exec, -1
    v_readfirstlane_b32 s52, v54
    """)
    stamp(13)
    for sh in (1, 2, 4, 8):
        for r in (52, 53):
            a(f"v_add_f32_dpp v{r}, v{r}, v{r} row_shr:{sh} row_mask:0xf bank_mask:0xf bound_ctrl:0")
    for r in (52, 53): a(f"v_add_f32_dpp v{r}, v{r}, v{r} row_bcast:15 row_mask:0xa bank_mask:0xf")
    for r in (52, 53): a(f"v_add_f32_dpp v{r}, v{r}, v{r} row_bcast:31 row_mask:0xc bank_mask:0xf")
    a(f"""
    v_mov_b32 v54, s52
    v_mov_b32 v8, {MISC}
    s_mov_b32 exec_lo, 0
    s_brev_b32 exec_hi, 1
    ds_write_b128 v8, v[52:55]
    s_cmp_lg_u32 s41, 0
    s_cbranch_scc1 L_x_noep
    v_mov_b32 v9, s42
    buffer_store_dword v9, off, s[36:39], 0
    L_x_noep:
    s_mov_b64 exec, -1
    s_waitcnt lgkmcnt(0)
    L_x_nofp:
    s_barrier
    v_mov_b32 v8, {MISC}
    ds_read_b128 v[52:55], v8
    s_waitcnt lgkmcnt(0)
    v_readfirstlane_b32 s52, v54
    v_lshrrev_b32 v9, 2, v54
    v_cmp_eq_u32 vcc, v9, v0
    s_and_saveexec_b64 s[60:61], vcc
    s_cbranch_execz L_x_end
    s_bitcmp1_b32 s52, 0
    s_cselect_b64 vcc, -1, 0
    v_cndmask_b32 v16, v16, v18, vcc
    v_cndmask_b32 v17, v17, v19, vcc
    v_cndmask_b32 v20, v20, v22, vcc
    v_cndmask_b32 v21, v21, v23, vcc
    s_bitcmp1_b32 s52, 1
    s_cselect_b64 vcc, -1, 0
    v_cndmask_b32 v16, v16, v20, vcc
    v_cndmask_b32 v17, v17, v21, vcc
    v_pk_add_f32 v[16:17], v[16:17], v[52:53]
    v_mul_u32_u24 v9, 896, v54
    v_cvt_pk_bf16_f32 v16, v16, v17
    buffer_store_dword v16, v9, s[28:31], s48 offen
    L_x_end:
    """)
    finish("L_x_probe", 15)
    role[0] = "k"
    a("""
    L_kw:
    v_and_b32 v3, 511, v0
    v_lshlrev_b32 v6, 1, v3
    s_lshl_b32 s47, s41, 10
    s_lshl_b32 s48, s41, 2
    s_sub_u32 s45, s40, 8
    v_mov_b32 v16, 0
    v_mov_b32 v17, 0
    v_mov_b32 v18, 0
    v_mov_b32 v19, 0
    s_waitcnt lgkmcnt(0)
    """)
    stamp(1)
    a("s_load_dword s54, s[14:15], s48")
    srd(20, 6, 229376)
    a("buffer_load_short_d16_hi v16, v6, s[20:23], s47 offen")
    srd(24, 8, 229376)
    a("buffer_load_short_d16_hi v17, v6, s[24:27], s47 offen")
    srd(28, 10, 229376)
    a("buffer_load_short_d16_hi v18, v6, s[28:31], s47 offen")
    srd(36, 12, 229376)
    a("buffer_load_short_d16_hi v19, v6, s[36:39], s47 offen")
    O = {0:0, 8:4, 1:9*128, 4:10*128, 2:14*128, 6:16*128, 3:18*128, 5:19*128, 7:20*128}
    GA = 20
    a(f"""
    v_and_b32 v11, 255, v0
    s_lshr_b32 s46, s45, 2
    s_mul_i32 s49, s46, {4*RS}
    v_lshl_add_u32 v{GA+1}, v11, 2, s49
    s_mul_i32 s49, s46, {2*KCS}
    s_add_u32 s49, s49, {KC+32}
    v_lshl_add_u32 v29, v11, 4, s49
    v_cmp_gt_u32 s[56:57], 32, v11
    v_cmp_gt_u32 s[58:59], 64, v11
    v_cmp_gt_u32 s[60:61], 33, v11
    v_cmp_gt_u32 vcc, 0x80, v11
    v_add_u32 v13, 4, v{GA+1}
    v_add_u32 v14, {O[4]}, v{GA+1}
    v_and_b32 v15, 1, v11
    v_lshl_add_u32 v15, v15, 2, v{GA+1}
    v_cndmask_b32 v{GA+5}, v15, v14, vcc
    v_cndmask_b32 v15, v{GA+1}, v14, vcc
    v_cndmask_b32 v14, v13, v14, vcc
    v_add_u32 v12, {O[1]}, v{GA+1}
    v_cndmask_b32 v{GA+2}, v{GA+1}, v12, s[56:57]
    v_add_u32 v12, {O[2]}, v{GA+1}
    v_cndmask_b32 v{GA+3}, v{GA+1}, v12, s[58:59]
    v_add_u32 v12, {O[3]}, v{GA+1}
    v_cndmask_b32 v{GA+4}, v15, v12, s[56:57]
    v_add_u32 v12, {O[5]}, v{GA+1}
    v_cndmask_b32 v{GA+6}, v14, v12, s[56:57]
    v_add_u32 v12, {O[6]}, v{GA+1}
    v_cndmask_b32 v{GA+7}, v13, v12, s[58:59]
    v_add_u32 v12, {O[7]}, v{GA+1}
    v_cndmask_b32 v{GA+8}, v13, v12, s[56:57]
    v_add_u32 v12, {O[7]-4}, v{GA+1}
    v_cndmask_b32 v{GA}, v{GA+1}, v12, s[60:61]
    v_cmp_eq_u32 s[56:57], 0, v11
    s_mul_i32 s49, s45, {RS}
    s_mov_b32 m0, s49
    v_and_b32 v30, 31, v1
    v_lshrrev_b32 v5, 5, v1
    v_mul_u32_u24 v30, 272, v30
    v_lshl_add_u32 v30, v5, 4, v30
    v_add_u32 v30, s49, v30
    """)
    a(f"""
    v_and_b32 v8, 15, v1
    v_lshrrev_b32 v9, 4, v1
    s_and_b32 s50, s45, 3
    s_lshl_b32 s52, s50, 7
    s_mul_i32 s51, s46, {2*KCS}
    s_add_u32 s51, s51, s52
    s_add_u32 s51, s51, {KC+KCS+4}
    v_and_b32 v10, 1, v8
    v_mul_u32_u24 v10, {KCS}, v10
    v_sub_u32 v10, s51, v10
    v_lshrrev_b32 v11, 1, v8
    v_lshl_add_u32 v10, v11, 2, v10
    v_lshl_add_u32 v0, v9, 4, v10
    s_mul_i32 s51, s46, {XCH}
    s_add_u32 s51, s51, s52
    s_add_u32 s51, s51, {XREV+480}
    v_lshlrev_b32 v10, 5, v8
    v_sub_u32 v10, s51, v10
    v_lshl_add_u32 v2, v9, 4, v10
    s_mul_i32 s51, s45, 576
    v_lshlrev_b32 v10, 6, v5
    v_lshl_add_u32 v10, v1, 3, v10
    v_add_u32 v31, s51, v10
    s_barrier
    s_waitcnt lgkmcnt(0)
    s_lshl_b32 s49, s46, 4
    s_sub_u32 s49, 16, s49
    s_lshl_b32 s54, s54, s49
    s_and_b32 s54, s54, 0xffff0000
    v_mov_b32 v3, {LOG2E}
    v_mul_f32 v4, s54, v3
    v_exp_f32 v4, v4
    """)
    stamp(2)
    a("s_waitcnt vmcnt(0)")
    stamp(3, True)
    a(f"""
    v_mul_f32 v16, v16, v3
    v_exp_f32 v16, v16
    v_cvt_pk_bf16_f32 v4, v4, v16
    v_and_b32 v16, 0xffff0000, v4
    v_lshlrev_b32 v4, 16, v4
    v_mul_f32 v16, v16, v4
    v_mul_f32 v17, v17, v4
    v_add_f32 v4, v4, v4
    v_mul_f32 v16, 0xbfb8aa3b, v16
    v_mul_f32 v17, 0.15915494, v17
    v_mul_f32 v18, v18, v4
    v_mul_f32 v19, -v19, v4
    """)
    Z1, W8, ZZ = 32, 14, 36
    a(f"""
    v_fract_f32 v7, v17
    v_mul_f32 v9, 0x43800000, v17
    v_mul_f32 v11, 0xc1000000, v17
    v_exp_f32 v6, v16
    v_mul_f32 v8, 0x43800000, v16
    v_mul_f32 v10, 0x41000000, v16
    v_fract_f32 v9, v9
    v_fract_f32 v11, v11
    v_cos_f32 v{Z1}, v7
    v_sin_f32 v{Z1+1}, v7
    v_exp_f32 v8, v8
    v_cos_f32 v{ZZ}, v9
    v_sin_f32 v{ZZ+1}, v9
    v_exp_f32 v10, v10
    v_cos_f32 v{W8}, v11
    v_sin_f32 v{W8+1}, v11
    v_pk_mul_f32 v[{Z1}:{Z1+1}], v[{Z1}:{Z1+1}], v[6:7] op_sel_hi:[1,0]
    v_pk_mul_f32 v[{ZZ}:{ZZ+1}], v[{ZZ}:{ZZ+1}], v[8:9] op_sel_hi:[1,0]
    v_pk_mul_f32 v[{W8}:{W8+1}], v[{W8}:{W8+1}], v[10:11] op_sel_hi:[1,0]
    """)
    slot_of = {0:0, 256:1, 512:2, 768:3, 1024:4, 1280:5, 1536:6, 1792:7, 2048:8, 1:9, 4:10, 260:11, 516:12, 772:13,
               2:14, 258:15, 6:16, 262:17, 3:18, 5:19, 7:20}
    tcount = [0]
    def putA(h, r):
        s = slot_of[h]; m, e = s >> 1, s & 1
        row = 8*(m >> 2) + 4*e + (m & 3)
        t = 8 + (tcount[0] & 3); tcount[0] += 1
        if r is None: a(f"v_mov_b32 v{t}, 0x3f80")
        else: a(f"v_cvt_pk_bf16_f32 v{t}, v{r}, v{r+1}")
        a(f"ds_write_addtid_b32 v{t} offset:{row*272}")
    z = {1: Z1, 256: ZZ}
    putA(0, None); putA(1, Z1); putA(256, ZZ)
    nxt = [38]
    def prod(h, p, q, keep=True):
        if keep:
            d = nxt[0]; nxt[0] += 2
        else: d = 60 + 2*(tcount[0] & 1)
        cmul(d, z[p], z[q]); z[h] = d; putA(h, d)
    prod(2, 1, 1); prod(512, 256, 256); prod(3, 2, 1); prod(768, 512, 256); prod(4, 2, 2); prod(1024, 512, 512)
    prod(6, 4, 2); prod(5, 4, 1, False); prod(7, 4, 3, False)
    for h, p, q in [(258,256,2), (260,256,4), (262,256,6), (516,512,4), (772,768,4), (1280,1024,256), (1536,1024,512), (1792,1024,768), (2048,1024,1024)]:
        prod(h, p, q, False)
    if "konly" in opt: stamp(7)
    for ks in range(8):
        a(f"ds_read_b128 v[{64+4*ks}:{67+4*ks}], v30 offset:{32*ks}")
    a("s_mov_b32 s49, 2\nL_k_bchain:")
    for j in range(16):
        t = 8 + (j & 3)
        a(f"v_cvt_pk_bf16_f32 v{t}, v18, v19")
        cmul(18, 18, W8, 12)
        a(f"ds_write_addtid_b32 v{t} offset:{j*272}")
    a(f"""
    s_add_u32 m0, m0, {16*272}
    s_sub_u32 s49, s49, 1
    s_cmp_lg_u32 s49, 0
    s_cbranch_scc1 L_k_bchain
    s_sub_u32 m0, m0, {32*272}
    """)
    stamp(4, True)
    for ks in range(8):
        a(f"ds_read_b128 v[{32+4*ks}:{35+4*ks}], v30 offset:{32*ks}")
    for ks in range(8):
        a(f"s_waitcnt lgkmcnt({7-ks})")
        c = "0" if ks == 0 else "v[96:111]"
        a(f"v_mfma_f32_32x32x16_bf16 v[96:111], v[{64+4*ks}:{67+4*ks}], v[{32+4*ks}:{35+4*ks}], {c}")
    for m in range(11):
        a(f"ds_write_addtid_b32 v{96+m} offset:{m*256}")
    a("s_waitcnt lgkmcnt(0)\ns_barrier")
    stamp(5, True)
    ds = DS(a)
    for i in range(9):
        ds.issue(f"ds_read2st64_b32 v[{32+4*i}:{33+4*i}], v{GA+i} offset0:0 offset1:34", i)
        ds.issue(f"ds_read2st64_b32 v[{34+4*i}:{35+4*i}], v{GA+i} offset0:68 offset1:102", i)
    a("v_add_u32 v3, 1024, v0\nv_add_u32 v4, 2048, v0\nv_add_u32 v5, 3072, v0")
    for i in range(9):
        ds.need(i)
        a(f"v_pk_add_f32 v[{32+4*i}:{33+4*i}], v[{32+4*i}:{33+4*i}], v[{34+4*i}:{35+4*i}]")
        a(f"v_add_f32 v{32+4*i}, v{32+4*i}, v{33+4*i}")
    a("v_cndmask_b32 v32, v32, 0, s[56:57]")
    k = lambda i: 36 + 4*i
    for d in range(4):
        a(f"v_cvt_pk_bf16_f32 v{72+d}, v{k(2*d-1)}, v{k(2*d)}")
    a(f"ds_write_b128 v29, v[72:75] offset:{KCS}")
    for d in range(4):
        a(f"v_cvt_pk_bf16_f32 v{68+d}, v{k(2*d)}, v{k(2*d+1)}")
    a(f"ds_write_b128 v29, v[68:71]")
    a("v_mov_b32 v6, v31")
    a("s_waitcnt lgkmcnt(0)\ns_barrier")
    stamp(6, True)
    AAD = [0, 3, 4, 5]
    A = lambda ri, s: 64 + 32*ri + 4*s
    ds = DS(a)
    for s in range(8):
        for ri in range(2):
            o = 128*(s & 1) + 16*ri
            ds.issue(f"ds_read2_b32 v[{A(ri,s)}:{A(ri,s)+1}], v{AAD[s>>1]} offset0:{o} offset1:{o+1}", ("A", ri, s))
            ds.issue(f"ds_read2_b32 v[{A(ri,s)+2}:{A(ri,s)+3}], v{AAD[s>>1]} offset0:{o+2} offset1:{o+3}", ("A", ri, s))
    a("s_barrier")
    stamp(8, True)
    NS = 7
    slot_reg = lambda i: 12 + 4*i
    accreg = {0: 40, 1: 44, 2: 48, 3: 52, 4: 56, 5: 60, 6: 40, 7: 44}
    uses = []
    ph_order = [
        [(0,0),(1,0),(0,1),(1,1)],
        [(0,0),(1,0),(0,1),(1,1),(0,2),(1,2),(0,3),(1,3),(0,4),(1,4)],
        [(1,4),(0,4),(1,3),(0,3),(1,2),(0,2),(0,1),(1,1),(0,0),(1,0),(0,5),(1,5),(0,6),(1,6),(0,7),(1,7)],
    ]
    for p, lst in enumerate(ph_order):
        for b in lst: uses.append((p, b))
    resident = {}
    free = list(range(NS))
    loaded_for = {}
    def next_use(b, after):
        for i in range(after, len(uses)):
            if uses[i][1] == b: return i
        return 10**9
    pf = [0]
    def prefetch(cur, maxn):
        n = 0
        while pf[0] < len(uses) and n < maxn:
            b = uses[pf[0]][1]
            if b in resident:
                pf[0] += 1; continue
            if not free:
                cand = [(next_use(x, cur), x) for x in resident]
                nu, x = max(cand)
                if nu <= pf[0]: break
                if nu < 10**9 and pf[0] - cur > 2: break
                free.append(resident.pop(x))
            sl = free.pop(0); resident[b] = sl
            ri, u = b
            ds.issue(f"ds_read_b128 v[{slot_reg(sl)}:{slot_reg(sl)+3}], v2 offset:{512*(7-u)+64*ri}", ("B", b))
            pf[0] += 1; n += 1
    prefetch(0, NS)
    started = set()
    pending = []
    def phase_end(p):
        def w():
            for J in PH[p]:
                t = 8 + 2*(J & 1)
                a(f"v_cvt_pk_bf16_f32 v{t}, v{accreg[J]}, v{accreg[J]+1}\nv_cvt_pk_bf16_f32 v{t+1}, v{accreg[J]+2}, v{accreg[J]+3}")
                ds.issue(f"ds_write_b64 v6, v[{t}:{t+1}] offset:{J*8*576}", ("Y", p))
        def bar():
            ds.need(("Y", p)); a("s_barrier")
        return w, bar
    nmf = 0
    for i, (p, b) in enumerate(uses):
        ri, u = b
        assert b in resident
        sl = resident[b]
        ds.need(("B", b))
        for J in PH[p]:
            s = J - u
            if s < 0: continue
            ds.need(("A", ri, s))
            c = f"v[{accreg[J]}:{accreg[J]+3}]" if J in started else "0"
            started.add(J)
            a(f"v_mfma_f32_16x16x32_bf16 v[{accreg[J]}:{accreg[J]+3}], v[{A(ri,s)}:{A(ri,s)+3}], v[{slot_reg(sl)}:{slot_reg(sl)+3}], {c}")
            nmf += 1
            for pe in pending: pe[0] -= 1
            while pending and pending[0][0] <= 0: pending.pop(0)[1]()
        prefetch(i + 1, 1)
        if i + 1 == len(uses) or uses[i+1][0] != p:
            w, bar = phase_end(p)
            if i + 1 == len(uses): w(); bar()
            else: pending += [[2, w], [5, bar]]
    assert nmf == 72 and not pending
    finish("L_k_probe", 10)
    role[0] = "f"
    F_XS, F_PART, F_MISC = 0, 1024, 5120
    G, GT, D, DT = 32, 64, 96, 32
    a(f"""
    L_ffn:
    s_cmp_ge_u32 s2, {0 if "konly" in opt else 252}
    s_cbranch_scc1 L_exit
    s_sub_u32 s41, s2, 224
    v_and_b32 v3, 15, v1
    v_lshrrev_b32 v4, 4, v1
    v_lshrrev_b32 v5, 3, v3
    v_lshl_add_u32 v5, v5, 2, v4
    v_mul_u32_u24 v5, 28672, v5
    v_and_b32 v6, 7, v3
    v_lshl_add_u32 v5, v6, 4, v5
    s_sub_u32 s53, s40, 1
    s_lshr_b32 s56, s53, 1
    s_mul_i32 s44, s56, 229376
    s_lshl_b32 s45, s41, 7
    s_add_u32 s44, s44, s45
    s_add_u32 s45, s44, 7168
    s_add_u32 s46, s44, 14336
    s_add_u32 s47, s44, 21504
    s_and_b32 s57, s53, 1
    s_waitcnt lgkmcnt(0)
    """)
    stamp(1)
    a("""
    s_load_dword s42, s[34:35], 0
    s_cselect_b64 s[8:9], s[24:25], s[22:23]
    s_mov_b32 s10, 1605632
    s_mov_b32 s11, 0x20000
    s_cmp_ge_u32 s53, 14
    s_cbranch_scc1 L_f_nogu
    """)
    for r in range(8):
        a(f"buffer_load_dwordx4 v[{G+4*r}:{G+4*r+3}], v5, s[8:11], s{44+(r>>1)} offen offset:{3584*(r&1)}")
    a("L_f_nogu:")
    srd(12, 26, 1605632); srd(36, 34, WS_SIZE); srd(4, 4, 1835008)
    a(f"""
    s_and_b32 s50, s40, 3
    s_bfe_u32 s51, s40, 0x10002
    s_lshl_b32 s48, s50, 4
    v_add_u32 v7, s48, v3
    v_mul_u32_u24 v8, 7168, v4
    v_cmp_gt_u32 vcc, 56, v7
    v_lshl_add_u32 v8, v7, 4, v8
    v_bfrev_b32 v9, -2
    v_lshl_add_u32 v10, v7, 2, v4
    v_lshlrev_b32 v10, 4, v10
    v_cndmask_b32 v8, v9, v8, vcc
    v_cndmask_b32 v10, v9, v10, vcc
    s_lshl_b32 s52, s41, 1
    s_add_u32 s52, s52, s51
    s_mul_i32 s48, s52, 28672
    s_add_u32 s49, s48, 3584
    s_mul_i32 s52, s52, 3584
    s_add_u32 s52, s52, {WS_FFN}
    s_cmp_lt_u32 s40, 8
    s_cbranch_scc1 L_f_nod
    """)
    for r in range(8):
        a(f"buffer_load_dwordx4 v[{D+4*r}:{D+4*r+3}], v8, s[12:15], s{48+(r>>2)} offen offset:{896*(r&3)}")
    a(f"""
    L_f_nod:
    s_mov_b32 s54, 0x05040100
    s_mov_b32 s55, 0x07060302
    v_and_b32 v14, 1, v3
    v_lshlrev_b32 v14, 6, v14
    v_lshl_add_u32 v14, v4, 4, v14
    s_lshl_b32 s44, s56, 7
    v_add_u32 v14, s44, v14
    v_lshl_add_u32 v15, v6, 2, v4
    v_lshlrev_b32 v15, 4, v15
    s_lshl_b32 s44, s56, 9
    s_lshl_b32 s45, s57, 2
    s_add_u32 s44, s44, s45
    s_add_u32 s44, s44, {F_PART}
    v_add_u32 v15, s44, v15
    v_lshl_add_u32 v16, v4, 3, v6
    v_lshlrev_b32 v16, 3, v16
    s_lshl_b32 s44, s51, 8
    v_add_u32 v16, s44, v16
    v_mov_b32 v17, {F_MISC}
    s_waitcnt lgkmcnt(0)
    """)
    next_tag()
    def transp(src, dst):
        for rp in range(4):
            for d in range(4):
                x, y = src + 8*rp + d, src + 8*rp + 4 + d
                a(f"v_perm_b32 v{dst+8*d+rp}, v{y}, v{x}, s54\nv_perm_b32 v{dst+8*d+4+rp}, v{y}, v{x}, s55")
    a("""
    s_cmp_eq_u32 s40, 0
    s_cbranch_scc1 L_f_router
    s_cmp_lt_u32 s40, 8
    s_cbranch_scc1 L_f_w0
    s_waitcnt vmcnt(8)
    s_branch L_f_w0j
    L_f_w0:
    s_waitcnt vmcnt(0)
    L_f_w0j:
    """)
    transp(G, GT)
    stamp(2)
    a("s_cmp_lt_u32 s40, 8\ns_cbranch_scc1 L_f_join\ns_waitcnt vmcnt(0)")
    transp(D, DT)
    stamp(3)
    a("s_branch L_f_join")
    a(f"""
    L_f_router:
    s_setprio 3
    v_lshlrev_b32 v18, 4, v1
    s_mov_b32 s44, {WS_KEY}
    s_mov_b32 s45, {WS_KEY+4096}
    s_mov_b32 s46, 0
    s_mov_b32 s47, {WS_KEY+8192-16}
    L_f_kpre:
    buffer_load_dwordx4 v[32:35], off, s[36:39], s47 sc1
    s_add_u32 s46, s46, 1
    s_cmp_ge_u32 s46, {SPIN_MAX}
    s_cbranch_scc1 L_f_kpoll
    s_waitcnt vmcnt(0)
    v_cmp_ne_u32 vcc, s42, v35
    s_cbranch_vccnz L_f_kpre
    """)
    stamp(2)
    a("L_f_kpoll:")
    for i in range(8):
        a(f"buffer_load_dwordx4 v[{32+4*i}:{35+4*i}], v18, s[36:39], s{44+(i>>2)} offen offset:{1024*(i&3)} sc1")
    a("v_mov_b32 v19, 0\nv_mov_b32 v20, 0")
    for i in range(8):
        a(f"s_waitcnt vmcnt({7-i})")
        a(f"v_bitop3_b32 v19, v{33+4*i}, s42, v19 bitop3:0xbe")
        a(f"v_max3_u32 v20, v{32+4*i}, v{34+4*i}, v20")
        a(f"v_bitop3_b32 v19, v{35+4*i}, s42, v19 bitop3:0xbe")
    a(f"""
    v_cmp_ne_u32 vcc, 0, v19
    s_cbranch_vccz L_f_kpolled
    s_add_u32 s46, s46, 1
    s_cmp_ge_u32 s46, {SPIN_MAX}
    s_cbranch_scc1 L_f_kpolled
    s_mov_b64 exec, vcc
    s_branch L_f_kpoll
    L_f_kpolled:
    s_mov_b64 exec, -1
    """)
    stamp(3)
    for sh in (1, 2, 4, 8):
        a(f"v_max_u32_dpp v20, v20, v20 row_shr:{sh} row_mask:0xf bank_mask:0xf")
    a("v_max_u32_dpp v20, v20, v20 row_bcast:15 row_mask:0xa bank_mask:0xf")
    a("v_max_u32_dpp v20, v20, v20 row_bcast:31 row_mask:0xc bank_mask:0xf")
    a(f"""
    v_readlane_b32 s44, v20, 63
    s_mov_b32 exec_hi, 0xffffff
    s_and_b32 s45, s44, 0x7ff
    s_sub_u32 s45, 2047, s45
    s_mul_i32 s46, s45, 896
    buffer_load_dwordx4 v[32:35], v18, s[4:7], s46 offen
    s_lshr_b32 s47, s45, 2
    s_lshl_b32 s47, s47, 4
    s_bfe_u32 s56, s45, 0x10001
    s_lshl_b32 s56, s56, 13
    s_add_u32 s47, s47, s56
    s_add_u32 s47, s47, {WS_STAT}
    s_mov_b32 s46, 0
    L_f_spoll:
    buffer_load_dwordx4 v[36:39], off, s[36:39], s47 sc1
    s_ashr_i32 s56, s44, 31
    s_not_b32 s56, s56
    s_or_b32 s56, s56, 0x80000000
    s_xor_b32 s56, s56, s44
    s_and_b32 s56, s56, 0xffff0000
    v_mov_b32 v21, 0xbfb8aa3b
    v_mul_f32 v21, s56, v21
    v_exp_f32 v21, v21
    v_mov_b32 v20, s45
    v_add_f32 v21, 1.0, v21
    v_rcp_f32 v21, v21
    s_add_u32 s46, s46, 1
    s_cmp_ge_u32 s46, {SPIN_MAX}
    s_cbranch_scc1 L_f_spolled
    s_waitcnt vmcnt(0)
    v_cmp_ne_u32 vcc, s42, v39
    s_cbranch_vccnz L_f_spoll
    L_f_spolled:
    s_waitcnt vmcnt(0)
    ds_write_b64 v17, v[20:21]
    """)
    stamp(4)
    a(f"""
    s_bitcmp1_b32 s45, 0
    s_cselect_b64 vcc, -1, 0
    v_lshlrev_b32 v40, 16, v38
    v_and_b32 v41, 0xffff0000, v38
    v_cndmask_b32 v36, v36, v37, vcc
    v_cndmask_b32 v37, v40, v41, vcc
    """)
    for d in range(4):
        a(f"v_lshlrev_b32 v{40+2*d}, 16, v{32+d}\nv_and_b32 v{41+2*d}, 0xffff0000, v{32+d}")
    for d in range(4):
        a(f"v_pk_add_f32 v[{40+2*d}:{41+2*d}], v[{40+2*d}:{41+2*d}], v[36:37] op_sel:[0,1] op_sel_hi:[1,1] neg_lo:[0,1] neg_hi:[0,1]")
    for d in range(4):
        a(f"v_pk_mul_f32 v[{40+2*d}:{41+2*d}], v[{40+2*d}:{41+2*d}], v[36:37] op_sel:[0,0] op_sel_hi:[1,0]")
    for d in range(4):
        a(f"v_cvt_pk_bf16_f32 v{32+d}, v{40+2*d}, v{41+2*d}")
    a(f"""
    ds_write_b128 v18, v[32:35] offset:{F_XS}
    s_mov_b64 exec, -1
    s_waitcnt lgkmcnt(0)
    L_f_join:
    s_barrier
    """)
    stamp(5, True)
    a(f"""
    s_cmp_ge_u32 s53, 14
    s_cbranch_scc1 L_f_nogu2
    ds_read_b128 v[20:23], v14 offset:{F_XS}
    s_waitcnt lgkmcnt(0)
    """)
    R = lambda c: 96 + 4*c
    for c in range(8):
        a(f"v_mfma_f32_16x16x32_bf16 v[{R(c)}:{R(c)+3}], v[20:23], v[{GT+4*c}:{GT+4*c+3}], 0")
    for c in range(8):
        a(f"v_add_f32_dpp v{4+(c&1)}, v{R(c)+1}, v{R(c)} row_ror:8 row_mask:{hex(1<<(c>>1))} bank_mask:0xf")
    a(f"""
    s_mov_b32 exec_lo, 0x00ff00ff
    s_mov_b32 exec_hi, 0x00ff00ff
    ds_write2_b32 v15, v4, v5 offset0:0 offset1:2
    s_mov_b64 exec, -1
    s_waitcnt lgkmcnt(0)
    L_f_nogu2:
    s_barrier
    s_cmp_lt_u32 s40, 8
    s_cbranch_scc1 L_f_end
    """)
    stamp(6, True)
    for w in range(7):
        a(f"ds_read_b64 v[{64+2*w}:{65+2*w}], v16 offset:{F_PART+512*w}")
    a("""
    ds_read_b64 v[30:31], v17
    v_mov_b32 v7, s42
    s_waitcnt lgkmcnt(6)
    v_pk_add_f32 v[64:65], v[64:65], v[66:67]
    s_waitcnt lgkmcnt(4)
    v_pk_add_f32 v[68:69], v[68:69], v[70:71]
    s_waitcnt lgkmcnt(2)
    v_pk_add_f32 v[72:73], v[72:73], v[74:75]
    v_pk_add_f32 v[64:65], v[64:65], v[68:69]
    s_waitcnt lgkmcnt(1)
    v_pk_add_f32 v[72:73], v[72:73], v[76:77]
    v_pk_add_f32 v[64:65], v[64:65], v[72:73]
    v_mul_f32 v66, 0xbfb8aa3b, v64
    v_exp_f32 v66, v66
    v_mul_f32 v64, v64, v65
    v_add_f32 v66, 1.0, v66
    v_rcp_f32 v66, v66
    s_waitcnt lgkmcnt(0)
    v_mul_f32 v64, v64, v66
    v_mov_b32 v6, v30
    v_mov_b32_dpp v65, v64 quad_perm:[1,1,3,3] row_mask:0xf bank_mask:0xf
    v_cvt_pk_bf16_f32 v64, v64, v65
    """)
    for q in range(4):
        a(f"v_mov_b32_dpp v{20+q}, v64 row_newbcast:{2*q} row_mask:0xf bank_mask:0xf")
    for c in range(8):
        a(f"v_mfma_f32_16x16x32_bf16 v[{R(c)}:{R(c)+3}], v[20:23], v[{DT+4*c}:{DT+4*c+3}], 0")
    for c in range(8):
        a(f"v_mul_f32_dpp v{4+(c&1)}, v{R(c)}, v31 quad_perm:[0,1,2,3] row_mask:{hex(1<<(c>>1))} bank_mask:0xf")
    a("buffer_store_dwordx4 v[4:7], v10, s[36:39], s52 offen sc1")
    stamp(7)
    a("L_f_end:")
    finish("L_f_probe", 9)
    a("L_exit:\ns_endpgm")
    a.pad(verbose=bool(os.environ.get("PADV")))
    hdr = open(os.path.join(os.path.dirname(__file__), "header.txt")).read()
    src = hdr + f"""; @launch grid=(252,1,1) block=(1024,1,1) lds={LDS_BYTES}
.amdgcn_target "amdgcn-amd-amdhsa--gfx950"
.text
.globl {KN}
.p2align 8
.type {KN},@function
""" + a.text() + f""".section .rodata,"a"
.p2align 6
.amdhsa_kernel {KN}
  .amdhsa_next_free_vgpr 128
  .amdhsa_next_free_sgpr {100 if (stamps or probe) else 64}
  .amdhsa_accum_offset 128
  .amdhsa_group_segment_fixed_size 0
  .amdhsa_kernarg_size 120
  .amdhsa_user_sgpr_count 2
  .amdhsa_user_sgpr_kernarg_segment_ptr 1
  .amdhsa_system_sgpr_workgroup_id_x 1
.end_amdhsa_kernel
"""
    return src

if __name__ == "__main__":
    out = sys.argv[1]
    opts = sys.argv[2:]
    probe = None
    for o in opts:
        if o.startswith("probe="):
            r, k, lo, hi = o[6:].split(",")
            probe = (r, int(k), (int(lo), int(hi)))
    open(out, "w").write(gen(stamps="stamps" in opts, probe=probe, opt=opts))
```

```python
import sys, os
sys.path.insert(0, os.path.dirname(__file__))
from asmlib import Asm
NAME = "parallel_sum__ssm_conv_s4d__moe_arch_mod__prompt"
KN = NAME + "_kernel"

WS_STAT = 0x1000
WS_KEY  = 0x5000
WS_FFN  = 0x8000
WS_XIN  = 0x40000
WS_DBG  = 0x800000
WS_SIZE = 0x1000000
RS   = 8704
XREV = 8*RS
XCH  = 4576
KC   = XREV + 2*XCH + 64
KCS  = 4160
MISC = KC + 4*KCS
LDS_BYTES = MISC + 64
LOG2E = 0x3fb8aa3b
SPIN_MAX = 200000
OOB = 0x7fffffff

class DS:
    def __init__(self, a): self.a = a; self.q = []; self.done = 0
    def issue(self, text, tag=None):
        self.a(text); self.q.append(tag)
    def need(self, tag):
        idx = max((i for i, t in enumerate(self.q) if t == tag), default=-1)
        if idx < self.done: return
        n = len(self.q) - 1 - idx
        n = min(n, 15)
        self.a(f"s_waitcnt lgkmcnt({n})")
        self.done = len(self.q) - n

def gen(stamps=False, probe=None, opt=()):
    a = Asm()
    role = ["c"]
    def stamp(k, wait=False):
        if stamps or (probe and (k == 0 or (probe[0] == role[0] and probe[1] == k))):
            a(f"{'s_memtime' if 'konly' in opt else 's_memrealtime'} s[{64+2*k}:{65+2*k}]")
            if wait: a("s_waitcnt lgkmcnt(0)")
    def finish(lbl, n):
        if stamps or probe:
            a("s_waitcnt vmcnt(0)"); stamp(n - 1)
        if stamps:
            a("s_waitcnt lgkmcnt(0)")
            a(f"s_lshl_b32 s62, s2, 4\ns_add_u32 s62, s62, s40\ns_lshl_b32 s62, s62, 6\ns_add_u32 s62, s62, {WS_DBG}")
            a(f"s_mov_b32 s56, s34\ns_mov_b32 s57, s35\ns_mov_b32 s58, {WS_SIZE}\ns_mov_b32 s59, 0x20000")
            a("s_mov_b64 exec, 1\nv_mov_b32 v1, 0")
            for k in range(n):
                a(f"v_mov_b32 v2, s{64+2*k}\nbuffer_store_dword v2, v1, s[56:59], s62 offen offset:{4*k}")
        if probe and (role[0] != "k" or probe[0] == "k"):
            if role[0] == "k": a("s_barrier")
            a("s_waitcnt vmcnt(0) lgkmcnt(0)\ns_add_u32 s96, s64, 3000")
            if probe[0] == role[0]:
                lo, hi = probe[2]
                a(f"s_cmp_lt_u32 s40, {lo}\ns_cbranch_scc1 {lbl}\ns_cmp_gt_u32 s40, {hi}\ns_cbranch_scc1 {lbl}")
                a(f"s_sub_u32 s97, s{64+2*probe[1]}, s64\ns_lshl_b32 s97, s97, 2\ns_add_u32 s96, s96, s97")
            a(f"{lbl}:\ns_memrealtime s[98:99]\ns_waitcnt lgkmcnt(0)\ns_sub_u32 s98, s98, s96\ns_cmp_lt_i32 s98, 0\ns_cbranch_scc1 {lbl}")
        a("s_endpgm")
    def srd(base, ptr, size):
        if ptr != base: a(f"s_mov_b64 s[{base}:{base+1}], s[{ptr}:{ptr+1}]")
        a(f"s_mov_b32 s{base+2}, {size}\ns_mov_b32 s{base+3}, 0x20000")
    def cmul(d, x, y, t=None):
        t = d if t is None else t
        a(f"v_pk_mul_f32 v[{t}:{t+1}], v[{x}:{x+1}], v[{y}:{y+1}] op_sel_hi:[0,1]")
        a(f"v_pk_fma_f32 v[{d}:{d+1}], v[{x}:{x+1}], v[{y}:{y+1}], v[{t}:{t+1}] op_sel:[1,1,0] op_sel_hi:[1,0,1] neg_lo:[0,1,0]")
    def next_tag():
        a("s_mul_i32 s42, s42, 0x9e3779b1\ns_add_u32 s42, s42, 0x7f4a7c15")
    a(f"{KN}:")
    stamp(0)
    a(f"""
    s_load_dwordx16 s[4:19], s[0:1], 0
    s_load_dwordx8 s[20:27], s[0:1], 64
    s_load_dwordx2 s[28:29], s[0:1], 96
    s_load_dwordx2 s[34:35], s[0:1], 112
    """)
    if "karg" in opt:
        a("s_waitcnt lgkmcnt(0)"); stamp(11)
    a(f"""
    v_lshrrev_b32 v2, 6, v0
    v_and_b32 v1, 63, v0
    s_and_b32 s43, s2, 7
    v_readfirstlane_b32 s40, v2
    s_lshr_b32 s44, s2, 3
    s_cmp_ge_u32 s44, 28
    s_cbranch_scc1 L_ffn
    s_mul_i32 s41, s43, 28
    s_add_u32 s41, s41, s44
    s_cmp_ge_u32 s40, 8
    s_cbranch_scc1 L_kw
    """)
    if "konly" in opt: a("s_endpgm")
    a(f"""
    s_mul_i32 s45, s40, 28
    s_add_u32 s45, s45, s44
    s_lshl_b32 s46, s43, 7
    s_add_u32 s47, s45, s46
    s_mul_i32 s46, s47, 1792
    v_and_b32 v3, 31, v1
    v_lshrrev_b32 v5, 5, v1
    v_cmp_gt_u32 vcc, 28, v3
    v_lshlrev_b32 v3, 5, v3
    v_mul_u32_u24 v4, 896, v5
    v_add_u32 v4, v4, v3
    v_bfrev_b32 v6, -2
    v_cndmask_b32 v4, v6, v4, vcc
    """)
    a("""
    v_and_b32 v7, 3, v1
    v_bfe_u32 v8, v1, 4, 1
    v_lshl_add_u32 v7, v8, 2, v7
    v_bfe_u32 v8, v1, 2, 2
    v_lshl_add_u32 v8, v5, 2, v8
    v_and_b32 v9, 3, v2
    v_lshl_add_u32 v8, v9, 3, v8
    v_mul_u32_u24 v9, 3584, v7
    v_lshl_add_u32 v9, v8, 2, v9
    s_mul_i32 s49, s44, 37
    s_lshr_b32 s49, s49, 8
    s_mul_i32 s50, s49, 7
    s_sub_u32 s50, s44, s50
    s_lshl_b32 s51, s43, 2
    s_add_u32 s49, s49, s51
    s_mul_i32 s51, s49, 57344
    s_lshl_b32 s52, s50, 7
    s_add_u32 s51, s51, s52
    s_add_u32 s52, s51, 28672
    s_lshl_b32 s48, s41, 2
    """)
    stamp(12)
    a("s_waitcnt lgkmcnt(0)")
    stamp(1)
    a("s_load_dword s42, s[34:35], 0")
    a("s_load_dword s55, s[16:17], s48")
    srd(4, 4, 1835008)
    a("s_cmp_ge_u32 s45, 128\ns_cbranch_scc1 L_x_nost0")
    a("""
    buffer_load_dwordx4 v[32:35], v4, s[4:7], s46 offen
    buffer_load_dwordx4 v[36:39], v4, s[4:7], s46 offen offset:16
    """)
    srd(8, 20, 896)
    a("""
    buffer_load_dwordx4 v[40:43], v3, s[8:11], 0 offen
    buffer_load_dwordx4 v[44:47], v3, s[8:11], 0 offen offset:16
    L_x_nost0:
    s_cmp_lt_u32 s40, 4
    s_cbranch_scc1 L_x_notile0
    """)
    for k, r in enumerate([64, 65, 66, 72]):
        a(f"buffer_load_dword v{r}, v9, s[4:7], s51 offen offset:{k*896}")
    for k, r in enumerate([68, 69, 70, 73]):
        a(f"buffer_load_dword v{r}, v9, s[4:7], s52 offen offset:{k*896}")
    a("L_x_notile0:")
    srd(36, 34, WS_SIZE); srd(28, 28, 1835008)
    a(f"""
    v_mul_u32_u24 v10, 12288, v8
    v_lshl_add_u32 v10, v7, 4, v10
    s_mul_i32 s53, s50, 393216
    s_mul_i32 s49, s49, 384
    s_add_u32 s53, s53, s49
    s_add_u32 s53, s53, {WS_XIN}
    v_mov_b32 v48, 0
    v_mov_b32 v49, 0
    v_mov_b32 v50, 0
    v_mov_b32 v51, 0
    v_lshrrev_b32 v11, 4, v0
    v_mul_u32_u24 v11, 384, v11
    v_and_b32 v12, 7, v0
    v_lshl_add_u32 v12, v12, 4, v11
    v_and_b32 v13, 15, v0
    v_lshl_add_u32 v11, v13, 4, v11
    v_lshlrev_b32 v13, 4, v0
    v_and_b32 v7, 8, v0
    v_cmp_ne_u32 s[56:57], 0, v7
    v_lshlrev_b32 v7, 3, v0
    v_sub_u32 v7, {XREV+4088}, v7
    v_mul_u32_u24 v6, 3584, v0
    v_and_b32 v8, 3, v1
    v_lshrrev_b32 v9, 2, v1
    v_lshl_add_u32 v24, v8, 4, v9
    v_lshrrev_b32 v25, 1, v8
    v_lshl_add_u32 v24, v25, 3, v24
    s_mul_i32 s51, s40, {8*576}
    v_lshl_add_u32 v24, v24, 3, s51
    """)
    a(f"""
    s_lshl_b32 s51, s44, 4
    v_add_u32 v9, s51, v9
    v_lshl_add_u32 v8, v8, 3, s43
    s_movk_i32 s52, 128
    s_cmp_eq_u32 s40, 7
    s_cselect_b32 s51, s52, 3584
    s_cselect_b32 s52, 57344, s52
    s_cselect_b64 s[12:13], s[26:27], s[24:25]
    s_cmp_eq_u32 s40, 5
    s_cselect_b64 s[12:13], s[22:23], s[12:13]
    s_mov_b32 s14, 1605632
    s_mov_b32 s15, 0x20000
    v_cmp_gt_u32 vcc, 28, v8
    v_mul_u32_u24 v9, s51, v9
    v_mul_u32_u24 v8, s52, v8
    v_add_u32 v25, v8, v9
    v_bfrev_b32 v8, -2
    v_cndmask_b32 v25, v8, v25, vcc
    """)
    a(f"""
    s_mul_i32 s51, s40, {XCH}
    s_add_u32 s51, s51, {XREV+4096}
    v_lshl_add_u32 v8, v1, 4, s51
    s_mov_b32 s52, 30
    s_cmp_lt_u32 s40, 2
    s_cbranch_scc1 L_x_pad
    s_cmp_lg_u32 s40, 2
    s_cbranch_scc1 L_x_nopad
    v_lshrrev_b32 v8, 1, v1
    v_mul_u32_u24 v8, {KCS-32}, v8
    v_lshl_add_u32 v8, v1, 4, v8
    v_add_u32 v8, {KC}, v8
    s_mov_b32 s52, 8
    L_x_pad:
    v_cmp_gt_u32 vcc, s52, v1
    s_and_saveexec_b64 s[60:61], vcc
    ds_write_b128 v8, v[48:51]
    s_mov_b64 exec, s[60:61]
    L_x_nopad:
    s_and_b32 s49, s47, 1
    s_lshl_b32 s49, s49, 13
    s_lshr_b32 s50, s47, 1
    s_lshl_b32 s50, s50, 4
    s_add_u32 s58, s49, s50
    s_add_u32 s58, s58, {WS_STAT}
    s_lshl_b32 s59, s47, 3
    s_add_u32 s59, s59, {WS_KEY}
    s_lshl_b32 s49, s47, 1
    s_sub_u32 s49, 2047, s49
    v_sub_u32 v58, s49, v5
    s_mov_b32 s50, 0xffff0000
    s_mov_b32 s49, 0x3f803f80
    s_waitcnt lgkmcnt(0)
    """)
    next_tag()
    a("s_barrier")
    stamp(2)
    a("""
    v_mov_b32 v55, s42
    v_mov_b32 v57, s42
    v_mov_b32 v67, s42
    v_mov_b32 v71, s42
    v_mov_b32 v75, s42
    s_cmp_ge_u32 s45, 128
    s_cbranch_scc1 L_x_nost1
    s_cmp_lt_u32 s40, 4
    s_cbranch_scc1 L_x_w4
    s_waitcnt vmcnt(8)
    s_branch L_x_w4j
    L_x_w4:
    s_waitcnt vmcnt(0)
    L_x_w4j:
    """)
    stamp(3)
    for i in range(8):
        a(f"""
        v_dot2c_f32_bf16 v48, s49, v{32+i}
        v_dot2c_f32_bf16 v49, v{32+i}, v{32+i}
        v_dot2c_f32_bf16 v50, v{32+i}, v{40+i}
        v_dot2c_f32_bf16 v51, s49, v{40+i}
        """)
    for sh in (1, 2, 4, 8):
        for r in (48, 49, 50, 51):
            a(f"v_add_f32_dpp v{r}, v{r}, v{r} row_shr:{sh} row_mask:0xf bank_mask:0xf bound_ctrl:0")
    for r in (48, 49, 50, 51):
        a(f"v_add_f32_dpp v{r}, v{r}, v{r} row_bcast:15 row_mask:0xa bank_mask:0xf")
    a(f"""
    v_mul_f32 v48, 0x3b124925, v48
    v_mul_f32 v49, 0x3b124925, v49
    v_fma_f32 v49, -v48, v48, v49
    v_max_f32 v49, 0, v49
    v_cvt_pk_bf16_f32 v52, v49, v48
    v_lshlrev_b32 v49, 16, v52
    v_add_f32 v49, 0x3727c5ac, v49
    v_cvt_pk_bf16_f32 v49, v49, v49
    v_lshlrev_b32 v49, 16, v49
    v_sqrt_f32 v49, v49
    v_and_b32 v54, 0xffff0000, v52
    v_cvt_pk_bf16_f32 v49, v49, v49
    v_lshlrev_b32 v49, 16, v49
    v_rcp_f32 v53, v49
    v_fma_f32 v50, -v54, v51, v50
    v_mov_b32_dpp v48, v54 row_bcast:31 row_mask:0xc bank_mask:0xf
    v_mul_f32 v50, v50, v53
    v_mov_b32_dpp v52, v53 row_bcast:31 row_mask:0xc bank_mask:0xf
    v_lshrrev_b32 v48, 16, v48
    v_cvt_pk_bf16_f32 v50, v50, v50
    v_or_b32 v54, v54, v48
    s_mov_b32 exec_lo, 0
    s_brev_b32 exec_hi, 1
    buffer_store_dwordx4 v[52:55], off, s[36:39], s58 sc1
    s_mov_b64 exec, -1
    v_ashrrev_i32 v51, 31, v50
    v_or_b32 v51, 0x80000000, v51
    v_xor_b32 v50, v50, v51
    v_and_or_b32 v56, v50, s50, v58
    v_max_u32_dpp v56, v56, v56 row_bcast:31 row_mask:0xc bank_mask:0xf
    s_mov_b32 exec_lo, 0
    s_brev_b32 exec_hi, 1
    buffer_store_dwordx2 v[56:57], off, s[36:39], s59 sc1
    s_mov_b64 exec, -1
    s_waitcnt vmcnt(2)
    s_branch L_x_st1j
    L_x_nost1:
    s_waitcnt vmcnt(0)
    L_x_st1j:
    s_cmp_lt_u32 s40, 4
    s_cbranch_scc1 L_x_notile1
    buffer_store_dwordx4 v[64:67], v10, s[36:39], s53 offen sc1
    buffer_store_dwordx4 v[68:71], v10, s[36:39], s53 offen offset:128 sc1
    buffer_store_dwordx4 v[72:75], v10, s[36:39], s53 offen offset:256 sc1
    """)
    if "nopf" not in opt:
        a("s_cmp_eq_u32 s40, 4\ns_cbranch_scc1 L_x_notile1")
        a("buffer_load_dword v26, v25, s[12:15], 0 offen")
        if "pf2" in opt: a("buffer_load_dword v27, v25, s[12:15], 0 offen offset:64")
    a("L_x_notile1:")
    stamp(4)
    a(f"""
    s_lshl_b32 s49, s55, 16
    s_and_b32 s50, s55, 0xffff0000
    v_mov_b32 v14, 1.0
    v_add_f32 v15, s50, v14
    v_add_f32 v14, s49, v14
    s_mul_i32 s51, s41, 12288
    s_add_u32 s51, s51, {WS_XIN}
    s_mov_b32 s52, {WS_STAT}
    s_mov_b32 s53, {WS_STAT+8192}
    s_mov_b32 s49, 0
    s_barrier
    """)
    stamp(5)
    def poll_loads():
        a("""
        buffer_load_dwordx4 v[112:115], v11, s[36:39], s51 offen sc1
        buffer_load_dwordx4 v[116:119], v12, s[36:39], s51 offen offset:256 sc1
        buffer_load_dwordx4 v[120:123], v13, s[36:39], s52 offen sc1
        buffer_load_dwordx4 v[124:127], v13, s[36:39], s53 offen sc1
        """)
    poll_loads()
    a("s_barrier")
    stamp(6)
    a(f"""
    L_x_poll:
    s_waitcnt vmcnt(0)
    v_xor_b32 v8, s42, v115
    v_bitop3_b32 v8, v119, s42, v8 bitop3:0xbe
    v_bitop3_b32 v8, v123, s42, v8 bitop3:0xbe
    v_bitop3_b32 v8, v127, s42, v8 bitop3:0xbe
    v_cmp_ne_u32 vcc, 0, v8
    s_cbranch_vccz L_x_polled
    s_add_u32 s49, s49, 1
    s_cmp_ge_u32 s49, {SPIN_MAX}
    s_cbranch_scc1 L_x_polled
    s_mov_b64 exec, vcc
    s_sleep 1
    """)
    poll_loads()
    a("""
    s_branch L_x_poll
    L_x_polled:
    s_mov_b64 exec, -1
    """)
    stamp(7)
    a("v_cndmask_b32 v115, v116, v117, s[56:57]")
    a("""
    v_lshlrev_b32 v8, 16, v122
    v_and_b32 v9, 0xffff0000, v122
    v_lshlrev_b32 v10, 16, v126
    v_and_b32 v11, 0xffff0000, v126
    """)
    for r in range(4):
        a(f"v_lshlrev_b32 v{16+2*r}, 16, v{112+r}\nv_and_b32 v{17+2*r}, 0xffff0000, v{112+r}")
    for r in range(4):
        e = r & 1; mm = 8 + 2*(r >> 1)
        a(f"v_pk_add_f32 v[{32+2*r}:{33+2*r}], v[{16+2*r}:{17+2*r}], v[{mm}:{mm+1}] op_sel:[0,{e}] op_sel_hi:[1,{e}] neg_lo:[0,1] neg_hi:[0,1]")
    for r in range(4):
        e = r & 1; rs = 120 + 4*(r >> 1)
        a(f"v_pk_mul_f32 v[{32+2*r}:{33+2*r}], v[{32+2*r}:{33+2*r}], v[{rs}:{rs+1}] op_sel:[0,{e}] op_sel_hi:[1,{e}]")
    a(f"""
    v_cvt_pk_bf16_f32 v40, v38, v36
    v_cvt_pk_bf16_f32 v41, v34, v32
    ds_write_b64 v7, v[40:41]
    v_cvt_pk_bf16_f32 v42, v39, v37
    v_cvt_pk_bf16_f32 v43, v35, v33
    ds_write_b64 v7, v[42:43] offset:{XCH}
    s_waitcnt lgkmcnt(0)
    s_barrier
    """)
    stamp(8)
    for r in range(4):
        a(f"v_pk_fma_f32 v[{16+2*r}:{17+2*r}], v[{32+2*r}:{33+2*r}], v[14:15], v[{16+2*r}:{17+2*r}]")
    PH = [[0, 1], [2, 3, 4], [5, 6, 7]]
    a(f"""
    s_mov_b32 s49, 0x3f80
    s_mov_b32 s50, 0x3f800000
    v_mul_u32_u24 v8, 3584, v1
    s_lshl_b32 s51, s41, 4
    s_add_u32 s51, s51, {WS_FFN}
    v_mov_b32 v52, 0
    v_mov_b32 v53, 0
    s_barrier
    s_cmp_lt_u32 s40, {PH[1][0]}
    s_cbranch_scc1 L_x_epi
    s_barrier
    s_cmp_lt_u32 s40, {PH[2][0]}
    s_cbranch_scc1 L_x_epi
    s_barrier
    L_x_epi:
    """)
    stamp(9, True)
    order = [0, 4, 1, 5, 2, 6, 3, 7]
    for i, kw in enumerate(order):
        a(f"ds_read_b64 v[{32+2*i}:{33+2*i}], v24 offset:{kw*576}")
    for hh in range(4):
        a(f"s_waitcnt lgkmcnt({6-2*hh})")
        for r in range(4):
            for ch in range(2):
                a(f"v_dot2c_f32_bf16 v{16+2*r+ch}, s{49+(r&1)}, v{32+4*hh+2*ch+(r>>1)}")
    for r in range(4):
        a(f"v_cvt_pk_bf16_f32 v{48+r}, v{16+2*r}, v{17+2*r}")
        a(f"buffer_store_dword v{48+r}, v6, s[28:31], s48 offen offset:{896*r}")
    stamp(10)
    a(f"""
    s_cmp_ge_u32 s40, {PH[2][0]}
    s_cbranch_scc1 L_x_nofp
    s_barrier
    s_cmp_ge_u32 s40, {PH[1][0]}
    s_cbranch_scc1 L_x_nofp
    s_barrier
    s_cmp_lg_u32 s40, 0
    s_cbranch_scc1 L_x_nofp
    s_mov_b32 s49, 0
    s_mov_b32 exec_hi, 0xffffff
    L_x_fpoll:
    buffer_load_dwordx4 v[52:55], v8, s[36:39], s51 offen sc1
    s_waitcnt vmcnt(0)
    v_cmp_ne_u32 vcc, s42, v55
    s_cbranch_vccz L_x_fpolled
    s_add_u32 s49, s49, 1
    s_cmp_ge_u32 s49, {SPIN_MAX}
    s_cbranch_scc1 L_x_fpolled
    s_mov_b64 exec, vcc
    s_sleep 1
    s_branch L_x_fpoll
    L_x_fpolled:
    s_mov_b64 exec, -1
    v_readfirstlane_b32 s52, v54
    """)
    stamp(13)
    for sh in (1, 2, 4, 8):
        for r in (52, 53):
            a(f"v_add_f32_dpp v{r}, v{r}, v{r} row_shr:{sh} row_mask:0xf bank_mask:0xf bound_ctrl:0")
    for r in (52, 53): a(f"v_add_f32_dpp v{r}, v{r}, v{r} row_bcast:15 row_mask:0xa bank_mask:0xf")
    for r in (52, 53): a(f"v_add_f32_dpp v{r}, v{r}, v{r} row_bcast:31 row_mask:0xc bank_mask:0xf")
    a(f"""
    v_mov_b32 v54, s52
    v_mov_b32 v8, {MISC}
    s_mov_b32 exec_lo, 0
    s_brev_b32 exec_hi, 1
    ds_write_b128 v8, v[52:55]
    s_cmp_lg_u32 s41, 0
    s_cbranch_scc1 L_x_noep
    v_mov_b32 v9, s42
    buffer_store_dword v9, off, s[36:39], 0
    L_x_noep:
    s_mov_b64 exec, -1
    s_waitcnt lgkmcnt(0)
    L_x_nofp:
    s_barrier
    v_mov_b32 v8, {MISC}
    ds_read_b128 v[52:55], v8
    s_waitcnt lgkmcnt(0)
    v_readfirstlane_b32 s52, v54
    v_lshrrev_b32 v9, 2, v54
    v_cmp_eq_u32 vcc, v9, v0
    s_and_saveexec_b64 s[60:61], vcc
    s_cbranch_execz L_x_end
    s_bitcmp1_b32 s52, 0
    s_cselect_b64 vcc, -1, 0
    v_cndmask_b32 v16, v16, v18, vcc
    v_cndmask_b32 v17, v17, v19, vcc
    v_cndmask_b32 v20, v20, v22, vcc
    v_cndmask_b32 v21, v21, v23, vcc
    s_bitcmp1_b32 s52, 1
    s_cselect_b64 vcc, -1, 0
    v_cndmask_b32 v16, v16, v20, vcc
    v_cndmask_b32 v17, v17, v21, vcc
    v_pk_add_f32 v[16:17], v[16:17], v[52:53]
    v_mul_u32_u24 v9, 896, v54
    v_cvt_pk_bf16_f32 v16, v16, v17
    buffer_store_dword v16, v9, s[28:31], s48 offen
    L_x_end:
    """)
    finish("L_x_probe", 15)
    role[0] = "k"
    a("""
    L_kw:
    v_and_b32 v3, 511, v0
    v_lshlrev_b32 v6, 1, v3
    s_lshl_b32 s47, s41, 10
    s_lshl_b32 s48, s41, 2
    s_sub_u32 s45, s40, 8
    v_mov_b32 v16, 0
    v_mov_b32 v17, 0
    v_mov_b32 v18, 0
    v_mov_b32 v19, 0
    s_waitcnt lgkmcnt(0)
    """)
    stamp(1)
    a("s_load_dword s54, s[14:15], s48")
    srd(20, 6, 229376)
    a("buffer_load_short_d16_hi v16, v6, s[20:23], s47 offen")
    srd(24, 8, 229376)
    a("buffer_load_short_d16_hi v17, v6, s[24:27], s47 offen")
    srd(28, 10, 229376)
    a("buffer_load_short_d16_hi v18, v6, s[28:31], s47 offen")
    srd(36, 12, 229376)
    a("buffer_load_short_d16_hi v19, v6, s[36:39], s47 offen")
    O = {0:0, 8:4, 1:9*128, 4:10*128, 2:14*128, 6:16*128, 3:18*128, 5:19*128, 7:20*128}
    GA = 20
    a(f"""
    v_and_b32 v11, 255, v0
    s_lshr_b32 s46, s45, 2
    s_mul_i32 s49, s46, {4*RS}
    v_lshl_add_u32 v{GA+1}, v11, 2, s49
    s_mul_i32 s49, s46, {2*KCS}
    s_add_u32 s49, s49, {KC+32}
    v_lshl_add_u32 v29, v11, 4, s49
    v_cmp_gt_u32 s[56:57], 32, v11
    v_cmp_gt_u32 s[58:59], 64, v11
    v_cmp_gt_u32 s[60:61], 33, v11
    v_cmp_gt_u32 vcc, 0x80, v11
    v_add_u32 v13, 4, v{GA+1}
    v_add_u32 v14, {O[4]}, v{GA+1}
    v_and_b32 v15, 1, v11
    v_lshl_add_u32 v15, v15, 2, v{GA+1}
    v_cndmask_b32 v{GA+5}, v15, v14, vcc
    v_cndmask_b32 v15, v{GA+1}, v14, vcc
    v_cndmask_b32 v14, v13, v14, vcc
    v_add_u32 v12, {O[1]}, v{GA+1}
    v_cndmask_b32 v{GA+2}, v{GA+1}, v12, s[56:57]
    v_add_u32 v12, {O[2]}, v{GA+1}
    v_cndmask_b32 v{GA+3}, v{GA+1}, v12, s[58:59]
    v_add_u32 v12, {O[3]}, v{GA+1}
    v_cndmask_b32 v{GA+4}, v15, v12, s[56:57]
    v_add_u32 v12, {O[5]}, v{GA+1}
    v_cndmask_b32 v{GA+6}, v14, v12, s[56:57]
    v_add_u32 v12, {O[6]}, v{GA+1}
    v_cndmask_b32 v{GA+7}, v13, v12, s[58:59]
    v_add_u32 v12, {O[7]}, v{GA+1}
    v_cndmask_b32 v{GA+8}, v13, v12, s[56:57]
    v_add_u32 v12, {O[7]-4}, v{GA+1}
    v_cndmask_b32 v{GA}, v{GA+1}, v12, s[60:61]
    v_cmp_eq_u32 s[56:57], 0, v11
    s_mul_i32 s49, s45, {RS}
    s_mov_b32 m0, s49
    v_and_b32 v30, 31, v1
    v_lshrrev_b32 v5, 5, v1
    v_mul_u32_u24 v30, 272, v30
    v_lshl_add_u32 v30, v5, 4, v30
    v_add_u32 v30, s49, v30
    """)
    a(f"""
    v_and_b32 v8, 15, v1
    v_lshrrev_b32 v9, 4, v1
    s_and_b32 s50, s45, 3
    s_lshl_b32 s52, s50, 7
    s_mul_i32 s51, s46, {2*KCS}
    s_add_u32 s51, s51, s52
    s_add_u32 s51, s51, {KC+KCS+4}
    v_and_b32 v10, 1, v8
    v_mul_u32_u24 v10, {KCS}, v10
    v_sub_u32 v10, s51, v10
    v_lshrrev_b32 v11, 1, v8
    v_lshl_add_u32 v10, v11, 2, v10
    v_lshl_add_u32 v0, v9, 4, v10
    s_mul_i32 s51, s46, {XCH}
    s_add_u32 s51, s51, s52
    s_add_u32 s51, s51, {XREV+480}
    v_lshlrev_b32 v10, 5, v8
    v_sub_u32 v10, s51, v10
    v_lshl_add_u32 v2, v9, 4, v10
    s_mul_i32 s51, s45, 576
    v_lshlrev_b32 v10, 6, v5
    v_lshl_add_u32 v10, v1, 3, v10
    v_add_u32 v31, s51, v10
    s_barrier
    s_waitcnt lgkmcnt(0)
    s_lshl_b32 s49, s46, 4
    s_sub_u32 s49, 16, s49
    s_lshl_b32 s54, s54, s49
    s_and_b32 s54, s54, 0xffff0000
    v_mov_b32 v3, {LOG2E}
    v_mul_f32 v4, s54, v3
    v_exp_f32 v4, v4
    """)
    stamp(2)
    a("s_waitcnt vmcnt(0)")
    stamp(3, True)
    a(f"""
    v_mul_f32 v16, v16, v3
    v_exp_f32 v16, v16
    v_cvt_pk_bf16_f32 v4, v4, v16
    v_and_b32 v16, 0xffff0000, v4
    v_lshlrev_b32 v4, 16, v4
    v_mul_f32 v16, v16, v4
    v_mul_f32 v17, v17, v4
    v_add_f32 v4, v4, v4
    v_mul_f32 v16, 0xbfb8aa3b, v16
    v_mul_f32 v17, 0.15915494, v17
    v_mul_f32 v18, v18, v4
    v_mul_f32 v19, -v19, v4
    """)
    Z1, W8, ZZ = 32, 14, 36
    a(f"""
    v_fract_f32 v7, v17
    v_mul_f32 v9, 0x43800000, v17
    v_mul_f32 v11, 0xc1000000, v17
    v_exp_f32 v6, v16
    v_mul_f32 v8, 0x43800000, v16
    v_mul_f32 v10, 0x41000000, v16
    v_fract_f32 v9, v9
    v_fract_f32 v11, v11
    v_cos_f32 v{Z1}, v7
    v_sin_f32 v{Z1+1}, v7
    v_exp_f32 v8, v8
    v_cos_f32 v{ZZ}, v9
    v_sin_f32 v{ZZ+1}, v9
    v_exp_f32 v10, v10
    v_cos_f32 v{W8}, v11
    v_sin_f32 v{W8+1}, v11
    v_pk_mul_f32 v[{Z1}:{Z1+1}], v[{Z1}:{Z1+1}], v[6:7] op_sel_hi:[1,0]
    v_pk_mul_f32 v[{ZZ}:{ZZ+1}], v[{ZZ}:{ZZ+1}], v[8:9] op_sel_hi:[1,0]
    v_pk_mul_f32 v[{W8}:{W8+1}], v[{W8}:{W8+1}], v[10:11] op_sel_hi:[1,0]
    """)
    slot_of = {0:0, 256:1, 512:2, 768:3, 1024:4, 1280:5, 1536:6, 1792:7, 2048:8, 1:9, 4:10, 260:11, 516:12, 772:13,
               2:14, 258:15, 6:16, 262:17, 3:18, 5:19, 7:20}
    tcount = [0]
    def putA(h, r):
        s = slot_of[h]; m, e = s >> 1, s & 1
        row = 8*(m >> 2) + 4*e + (m & 3)
        t = 8 + (tcount[0] & 3); tcount[0] += 1
        if r is None: a(f"v_mov_b32 v{t}, 0x3f80")
        else: a(f"v_cvt_pk_bf16_f32 v{t}, v{r}, v{r+1}")
        a(f"ds_write_addtid_b32 v{t} offset:{row*272}")
    z = {1: Z1, 256: ZZ}
    putA(0, None); putA(1, Z1); putA(256, ZZ)
    nxt = [38]
    def prod(h, p, q, keep=True):
        if keep:
            d = nxt[0]; nxt[0] += 2
        else: d = 60 + 2*(tcount[0] & 1)
        cmul(d, z[p], z[q]); z[h] = d; putA(h, d)
    prod(2, 1, 1); prod(512, 256, 256); prod(3, 2, 1); prod(768, 512, 256); prod(4, 2, 2); prod(1024, 512, 512)
    prod(6, 4, 2); prod(5, 4, 1, False); prod(7, 4, 3, False)
    for h, p, q in [(258,256,2), (260,256,4), (262,256,6), (516,512,4), (772,768,4), (1280,1024,256), (1536,1024,512), (1792,1024,768), (2048,1024,1024)]:
        prod(h, p, q, False)
    if "konly" in opt: stamp(7)
    for ks in range(8):
        a(f"ds_read_b128 v[{64+4*ks}:{67+4*ks}], v30 offset:{32*ks}")
    a("s_mov_b32 s49, 2\nL_k_bchain:")
    for j in range(16):
        t = 8 + (j & 3)
        a(f"v_cvt_pk_bf16_f32 v{t}, v18, v19")
        cmul(18, 18, W8, 12)
        a(f"ds_write_addtid_b32 v{t} offset:{j*272}")
    a(f"""
    s_add_u32 m0, m0, {16*272}
    s_sub_u32 s49, s49, 1
    s_cmp_lg_u32 s49, 0
    s_cbranch_scc1 L_k_bchain
    s_sub_u32 m0, m0, {32*272}
    """)
    stamp(4, True)
    for ks in range(8):
        a(f"ds_read_b128 v[{32+4*ks}:{35+4*ks}], v30 offset:{32*ks}")
    for ks in range(8):
        a(f"s_waitcnt lgkmcnt({7-ks})")
        c = "0" if ks == 0 else "v[96:111]"
        a(f"v_mfma_f32_32x32x16_bf16 v[96:111], v[{64+4*ks}:{67+4*ks}], v[{32+4*ks}:{35+4*ks}], {c}")
    for m in range(11):
        a(f"ds_write_addtid_b32 v{96+m} offset:{m*256}")
    a("s_waitcnt lgkmcnt(0)\ns_barrier")
    stamp(5, True)
    ds = DS(a)
    for i in range(9):
        ds.issue(f"ds_read2st64_b32 v[{32+4*i}:{33+4*i}], v{GA+i} offset0:0 offset1:34", i)
        ds.issue(f"ds_read2st64_b32 v[{34+4*i}:{35+4*i}], v{GA+i} offset0:68 offset1:102", i)
    a("v_add_u32 v3, 1024, v0\nv_add_u32 v4, 2048, v0\nv_add_u32 v5, 3072, v0")
    for i in range(9):
        ds.need(i)
        a(f"v_pk_add_f32 v[{32+4*i}:{33+4*i}], v[{32+4*i}:{33+4*i}], v[{34+4*i}:{35+4*i}]")
        a(f"v_add_f32 v{32+4*i}, v{32+4*i}, v{33+4*i}")
    a("v_cndmask_b32 v32, v32, 0, s[56:57]")
    k = lambda i: 36 + 4*i
    for d in range(4):
        a(f"v_cvt_pk_bf16_f32 v{72+d}, v{k(2*d-1)}, v{k(2*d)}")
    a(f"ds_write_b128 v29, v[72:75] offset:{KCS}")
    for d in range(4):
        a(f"v_cvt_pk_bf16_f32 v{68+d}, v{k(2*d)}, v{k(2*d+1)}")
    a(f"ds_write_b128 v29, v[68:71]")
    a("v_mov_b32 v6, v31")
    a("s_waitcnt lgkmcnt(0)\ns_barrier")
    stamp(6, True)
    AAD = [0, 3, 4, 5]
    A = lambda ri, s: 64 + 32*ri + 4*s
    ds = DS(a)
    for s in range(8):
        for ri in range(2):
            o = 128*(s & 1) + 16*ri
            ds.issue(f"ds_read2_b32 v[{A(ri,s)}:{A(ri,s)+1}], v{AAD[s>>1]} offset0:{o} offset1:{o+1}", ("A", ri, s))
            ds.issue(f"ds_read2_b32 v[{A(ri,s)+2}:{A(ri,s)+3}], v{AAD[s>>1]} offset0:{o+2} offset1:{o+3}", ("A", ri, s))
    a("s_barrier")
    stamp(8, True)
    NS = 7
    slot_reg = lambda i: 12 + 4*i
    accreg = {0: 40, 1: 44, 2: 48, 3: 52, 4: 56, 5: 60, 6: 40, 7: 44}
    uses = []
    ph_order = [
        [(0,0),(1,0),(0,1),(1,1)],
        [(0,0),(1,0),(0,1),(1,1),(0,2),(1,2),(0,3),(1,3),(0,4),(1,4)],
        [(1,4),(0,4),(1,3),(0,3),(1,2),(0,2),(0,1),(1,1),(0,0),(1,0),(0,5),(1,5),(0,6),(1,6),(0,7),(1,7)],
    ]
    for p, lst in enumerate(ph_order):
        for b in lst: uses.append((p, b))
    resident = {}
    free = list(range(NS))
    loaded_for = {}
    def next_use(b, after):
        for i in range(after, len(uses)):
            if uses[i][1] == b: return i
        return 10**9
    pf = [0]
    def prefetch(cur, maxn):
        n = 0
        while pf[0] < len(uses) and n < maxn:
            b = uses[pf[0]][1]
            if b in resident:
                pf[0] += 1; continue
            if not free:
                cand = [(next_use(x, cur), x) for x in resident]
                nu, x = max(cand)
                if nu <= pf[0]: break
                if nu < 10**9 and pf[0] - cur > 2: break
                free.append(resident.pop(x))
            sl = free.pop(0); resident[b] = sl
            ri, u = b
            ds.issue(f"ds_read_b128 v[{slot_reg(sl)}:{slot_reg(sl)+3}], v2 offset:{512*(7-u)+64*ri}", ("B", b))
            pf[0] += 1; n += 1
    prefetch(0, NS)
    started = set()
    pending = []
    def phase_end(p):
        def w():
            for J in PH[p]:
                t = 8 + 2*(J & 1)
                a(f"v_cvt_pk_bf16_f32 v{t}, v{accreg[J]}, v{accreg[J]+1}\nv_cvt_pk_bf16_f32 v{t+1}, v{accreg[J]+2}, v{accreg[J]+3}")
                ds.issue(f"ds_write_b64 v6, v[{t}:{t+1}] offset:{J*8*576}", ("Y", p))
        def bar():
            ds.need(("Y", p)); a("s_barrier")
        return w, bar
    nmf = 0
    for i, (p, b) in enumerate(uses):
        ri, u = b
        assert b in resident
        sl = resident[b]
        ds.need(("B", b))
        for J in PH[p]:
            s = J - u
            if s < 0: continue
            ds.need(("A", ri, s))
            c = f"v[{accreg[J]}:{accreg[J]+3}]" if J in started else "0"
            started.add(J)
            a(f"v_mfma_f32_16x16x32_bf16 v[{accreg[J]}:{accreg[J]+3}], v[{A(ri,s)}:{A(ri,s)+3}], v[{slot_reg(sl)}:{slot_reg(sl)+3}], {c}")
            nmf += 1
            for pe in pending: pe[0] -= 1
            while pending and pending[0][0] <= 0: pending.pop(0)[1]()
        prefetch(i + 1, 1)
        if i + 1 == len(uses) or uses[i+1][0] != p:
            w, bar = phase_end(p)
            if i + 1 == len(uses): w(); bar()
            else: pending += [[2, w], [5, bar]]
    assert nmf == 72 and not pending
    finish("L_k_probe", 10)
    role[0] = "f"
    F_XS, F_PART, F_MISC = 0, 1024, 5120
    G, GT, D, DT = 32, 64, 96, 32
    a(f"""
    L_ffn:
    s_cmp_ge_u32 s2, {0 if "konly" in opt else 252}
    s_cbranch_scc1 L_exit
    s_sub_u32 s41, s2, 224
    v_and_b32 v3, 15, v1
    v_lshrrev_b32 v4, 4, v1
    v_lshrrev_b32 v5, 3, v3
    v_lshl_add_u32 v5, v5, 2, v4
    v_mul_u32_u24 v5, 28672, v5
    v_and_b32 v6, 7, v3
    v_lshl_add_u32 v5, v6, 4, v5
    s_sub_u32 s53, s40, 1
    s_lshr_b32 s56, s53, 1
    s_mul_i32 s44, s56, 229376
    s_lshl_b32 s45, s41, 7
    s_add_u32 s44, s44, s45
    s_add_u32 s45, s44, 7168
    s_add_u32 s46, s44, 14336
    s_add_u32 s47, s44, 21504
    s_and_b32 s57, s53, 1
    s_waitcnt lgkmcnt(0)
    """)
    stamp(1)
    a("""
    s_load_dword s42, s[34:35], 0
    s_cselect_b64 s[8:9], s[24:25], s[22:23]
    s_mov_b32 s10, 1605632
    s_mov_b32 s11, 0x20000
    s_cmp_ge_u32 s53, 14
    s_cbranch_scc1 L_f_nogu
    """)
    for r in range(8):
        a(f"buffer_load_dwordx4 v[{G+4*r}:{G+4*r+3}], v5, s[8:11], s{44+(r>>1)} offen offset:{3584*(r&1)}")
    a("L_f_nogu:")
    srd(12, 26, 1605632); srd(36, 34, WS_SIZE); srd(4, 4, 1835008)
    a(f"""
    s_and_b32 s50, s40, 3
    s_bfe_u32 s51, s40, 0x10002
    s_lshl_b32 s48, s50, 4
    v_add_u32 v7, s48, v3
    v_mul_u32_u24 v8, 7168, v4
    v_cmp_gt_u32 vcc, 56, v7
    v_lshl_add_u32 v8, v7, 4, v8
    v_bfrev_b32 v9, -2
    v_lshl_add_u32 v10, v7, 2, v4
    v_lshlrev_b32 v10, 4, v10
    v_cndmask_b32 v8, v9, v8, vcc
    v_cndmask_b32 v10, v9, v10, vcc
    s_lshl_b32 s52, s41, 1
    s_add_u32 s52, s52, s51
    s_mul_i32 s48, s52, 28672
    s_add_u32 s49, s48, 3584
    s_mul_i32 s52, s52, 3584
    s_add_u32 s52, s52, {WS_FFN}
    s_cmp_lt_u32 s40, 8
    s_cbranch_scc1 L_f_nod
    """)
    for r in range(8):
        a(f"buffer_load_dwordx4 v[{D+4*r}:{D+4*r+3}], v8, s[12:15], s{48+(r>>2)} offen offset:{896*(r&3)}")
    a(f"""
    L_f_nod:
    s_mov_b32 s54, 0x05040100
    s_mov_b32 s55, 0x07060302
    v_and_b32 v14, 1, v3
    v_lshlrev_b32 v14, 6, v14
    v_lshl_add_u32 v14, v4, 4, v14
    s_lshl_b32 s44, s56, 7
    v_add_u32 v14, s44, v14
    v_lshl_add_u32 v15, v6, 2, v4
    v_lshlrev_b32 v15, 4, v15
    s_lshl_b32 s44, s56, 9
    s_lshl_b32 s45, s57, 2
    s_add_u32 s44, s44, s45
    s_add_u32 s44, s44, {F_PART}
    v_add_u32 v15, s44, v15
    v_lshl_add_u32 v16, v4, 3, v6
    v_lshlrev_b32 v16, 3, v16
    s_lshl_b32 s44, s51, 8
    v_add_u32 v16, s44, v16
    v_mov_b32 v17, {F_MISC}
    s_waitcnt lgkmcnt(0)
    """)
    next_tag()
    def transp(src, dst):
        for rp in range(4):
            for d in range(4):
                x, y = src + 8*rp + d, src + 8*rp + 4 + d
                a(f"v_perm_b32 v{dst+8*d+rp}, v{y}, v{x}, s54\nv_perm_b32 v{dst+8*d+4+rp}, v{y}, v{x}, s55")
    a("""
    s_cmp_eq_u32 s40, 0
    s_cbranch_scc1 L_f_router
    s_cmp_lt_u32 s40, 8
    s_cbranch_scc1 L_f_w0
    s_waitcnt vmcnt(8)
    s_branch L_f_w0j
    L_f_w0:
    s_waitcnt vmcnt(0)
    L_f_w0j:
    """)
    transp(G, GT)
    stamp(2)
    a("s_cmp_lt_u32 s40, 8\ns_cbranch_scc1 L_f_join\ns_waitcnt vmcnt(0)")
    transp(D, DT)
    stamp(3)
    a("s_branch L_f_join")
    a(f"""
    L_f_router:
    s_setprio 3
    v_lshlrev_b32 v18, 4, v1
    s_mov_b32 s44, {WS_KEY}
    s_mov_b32 s45, {WS_KEY+4096}
    s_mov_b32 s46, 0
    s_mov_b32 s47, {WS_KEY+8192-16}
    L_f_kpre:
    buffer_load_dwordx4 v[32:35], off, s[36:39], s47 sc1
    s_add_u32 s46, s46, 1
    s_cmp_ge_u32 s46, {SPIN_MAX}
    s_cbranch_scc1 L_f_kpoll
    s_waitcnt vmcnt(0)
    v_cmp_ne_u32 vcc, s42, v35
    s_cbranch_vccnz L_f_kpre
    """)
    stamp(2)
    a("L_f_kpoll:")
    for i in range(8):
        a(f"buffer_load_dwordx4 v[{32+4*i}:{35+4*i}], v18, s[36:39], s{44+(i>>2)} offen offset:{1024*(i&3)} sc1")
    a("v_mov_b32 v19, 0\nv_mov_b32 v20, 0")
    for i in range(8):
        a(f"s_waitcnt vmcnt({7-i})")
        a(f"v_bitop3_b32 v19, v{33+4*i}, s42, v19 bitop3:0xbe")
        a(f"v_max3_u32 v20, v{32+4*i}, v{34+4*i}, v20")
        a(f"v_bitop3_b32 v19, v{35+4*i}, s42, v19 bitop3:0xbe")
    a(f"""
    v_cmp_ne_u32 vcc, 0, v19
    s_cbranch_vccz L_f_kpolled
    s_add_u32 s46, s46, 1
    s_cmp_ge_u32 s46, {SPIN_MAX}
    s_cbranch_scc1 L_f_kpolled
    s_mov_b64 exec, vcc
    s_branch L_f_kpoll
    L_f_kpolled:
    s_mov_b64 exec, -1
    """)
    stamp(3)
    for sh in (1, 2, 4, 8):
        a(f"v_max_u32_dpp v20, v20, v20 row_shr:{sh} row_mask:0xf bank_mask:0xf")
    a("v_max_u32_dpp v20, v20, v20 row_bcast:15 row_mask:0xa bank_mask:0xf")
    a("v_max_u32_dpp v20, v20, v20 row_bcast:31 row_mask:0xc bank_mask:0xf")
    a(f"""
    v_readlane_b32 s44, v20, 63
    s_mov_b32 exec_hi, 0xffffff
    s_and_b32 s45, s44, 0x7ff
    s_sub_u32 s45, 2047, s45
    s_mul_i32 s46, s45, 896
    buffer_load_dwordx4 v[32:35], v18, s[4:7], s46 offen
    s_lshr_b32 s47, s45, 2
    s_lshl_b32 s47, s47, 4
    s_bfe_u32 s56, s45, 0x10001
    s_lshl_b32 s56, s56, 13
    s_add_u32 s47, s47, s56
    s_add_u32 s47, s47, {WS_STAT}
    s_mov_b32 s46, 0
    L_f_spoll:
    buffer_load_dwordx4 v[36:39], off, s[36:39], s47 sc1
    s_ashr_i32 s56, s44, 31
    s_not_b32 s56, s56
    s_or_b32 s56, s56, 0x80000000
    s_xor_b32 s56, s56, s44
    s_and_b32 s56, s56, 0xffff0000
    v_mov_b32 v21, 0xbfb8aa3b
    v_mul_f32 v21, s56, v21
    v_exp_f32 v21, v21
    v_mov_b32 v20, s45
    v_add_f32 v21, 1.0, v21
    v_rcp_f32 v21, v21
    s_add_u32 s46, s46, 1
    s_cmp_ge_u32 s46, {SPIN_MAX}
    s_cbranch_scc1 L_f_spolled
    s_waitcnt vmcnt(0)
    v_cmp_ne_u32 vcc, s42, v39
    s_cbranch_vccnz L_f_spoll
    L_f_spolled:
    s_waitcnt vmcnt(0)
    ds_write_b64 v17, v[20:21]
    """)
    stamp(4)
    a(f"""
    s_bitcmp1_b32 s45, 0
    s_cselect_b64 vcc, -1, 0
    v_lshlrev_b32 v40, 16, v38
    v_and_b32 v41, 0xffff0000, v38
    v_cndmask_b32 v36, v36, v37, vcc
    v_cndmask_b32 v37, v40, v41, vcc
    """)
    for d in range(4):
        a(f"v_lshlrev_b32 v{40+2*d}, 16, v{32+d}\nv_and_b32 v{41+2*d}, 0xffff0000, v{32+d}")
    for d in range(4):
        a(f"v_pk_add_f32 v[{40+2*d}:{41+2*d}], v[{40+2*d}:{41+2*d}], v[36:37] op_sel:[0,1] op_sel_hi:[1,1] neg_lo:[0,1] neg_hi:[0,1]")
    for d in range(4):
        a(f"v_pk_mul_f32 v[{40+2*d}:{41+2*d}], v[{40+2*d}:{41+2*d}], v[36:37] op_sel:[0,0] op_sel_hi:[1,0]")
    for d in range(4):
        a(f"v_cvt_pk_bf16_f32 v{32+d}, v{40+2*d}, v{41+2*d}")
    a(f"""
    ds_write_b128 v18, v[32:35] offset:{F_XS}
    s_mov_b64 exec, -1
    s_waitcnt lgkmcnt(0)
    L_f_join:
    s_barrier
    """)
    stamp(5, True)
    a(f"""
    s_cmp_ge_u32 s53, 14
    s_cbranch_scc1 L_f_nogu2
    ds_read_b128 v[20:23], v14 offset:{F_XS}
    s_waitcnt lgkmcnt(0)
    """)
    R = lambda c: 96 + 4*c
    for c in range(8):
        a(f"v_mfma_f32_16x16x32_bf16 v[{R(c)}:{R(c)+3}], v[20:23], v[{GT+4*c}:{GT+4*c+3}], 0")
    for c in range(8):
        a(f"v_add_f32_dpp v{4+(c&1)}, v{R(c)+1}, v{R(c)} row_ror:8 row_mask:{hex(1<<(c>>1))} bank_mask:0xf")
    a(f"""
    s_mov_b32 exec_lo, 0x00ff00ff
    s_mov_b32 exec_hi, 0x00ff00ff
    ds_write2_b32 v15, v4, v5 offset0:0 offset1:2
    s_mov_b64 exec, -1
    s_waitcnt lgkmcnt(0)
    L_f_nogu2:
    s_barrier
    s_cmp_lt_u32 s40, 8
    s_cbranch_scc1 L_f_end
    """)
    stamp(6, True)
    for w in range(7):
        a(f"ds_read_b64 v[{64+2*w}:{65+2*w}], v16 offset:{F_PART+512*w}")
    a("""
    ds_read_b64 v[30:31], v17
    v_mov_b32 v7, s42
    s_waitcnt lgkmcnt(6)
    v_pk_add_f32 v[64:65], v[64:65], v[66:67]
    s_waitcnt lgkmcnt(4)
    v_pk_add_f32 v[68:69], v[68:69], v[70:71]
    s_waitcnt lgkmcnt(2)
    v_pk_add_f32 v[72:73], v[72:73], v[74:75]
    v_pk_add_f32 v[64:65], v[64:65], v[68:69]
    s_waitcnt lgkmcnt(1)
    v_pk_add_f32 v[72:73], v[72:73], v[76:77]
    v_pk_add_f32 v[64:65], v[64:65], v[72:73]
    v_mul_f32 v66, 0xbfb8aa3b, v64
    v_exp_f32 v66, v66
    v_mul_f32 v64, v64, v65
    v_add_f32 v66, 1.0, v66
    v_rcp_f32 v66, v66
    s_waitcnt lgkmcnt(0)
    v_mul_f32 v64, v64, v66
    v_mov_b32 v6, v30
    v_mov_b32_dpp v65, v64 quad_perm:[1,1,3,3] row_mask:0xf bank_mask:0xf
    v_cvt_pk_bf16_f32 v64, v64, v65
    """)
    for q in range(4):
        a(f"v_mov_b32_dpp v{20+q}, v64 row_newbcast:{2*q} row_mask:0xf bank_mask:0xf")
    for c in range(8):
        a(f"v_mfma_f32_16x16x32_bf16 v[{R(c)}:{R(c)+3}], v[20:23], v[{DT+4*c}:{DT+4*c+3}], 0")
    for c in range(8):
        a(f"v_mul_f32_dpp v{4+(c&1)}, v{R(c)}, v31 quad_perm:[0,1,2,3] row_mask:{hex(1<<(c>>1))} bank_mask:0xf")
    a("buffer_store_dwordx4 v[4:7], v10, s[36:39], s52 offen sc1")
    stamp(7)
    a("L_f_end:")
    finish("L_f_probe", 9)
    a("L_exit:\ns_endpgm")
    a.pad(verbose=bool(os.environ.get("PADV")))
    hdr = open(os.path.join(os.path.dirname(__file__), "header.txt")).read()
    src = hdr + f"""; @launch grid=(252,1,1) block=(1024,1,1) lds={LDS_BYTES}
.amdgcn_target "amdgcn-amd-amdhsa--gfx950"
.text
.globl {KN}
.p2align 8
.type {KN},@function
""" + a.text() + f""".section .rodata,"a"
.p2align 6
.amdhsa_kernel {KN}
  .amdhsa_next_free_vgpr 128
  .amdhsa_next_free_sgpr {100 if (stamps or probe) else 64}
  .amdhsa_accum_offset 128
  .amdhsa_group_segment_fixed_size 0
  .amdhsa_kernarg_size 120
  .amdhsa_user_sgpr_count 2
  .amdhsa_user_sgpr_kernarg_segment_ptr 1
  .amdhsa_system_sgpr_workgroup_id_x 1
.end_amdhsa_kernel
"""
    return src

if __name__ == "__main__":
    out = sys.argv[1]
    opts = sys.argv[2:]
    probe = None
    for o in opts:
        if o.startswith("probe="):
            r, k, lo, hi = o[6:].split(",")
            probe = (r, int(k), (int(lo), int(hi)))
    open(out, "w").write(gen(stamps="stamps" in opts, probe=probe, opt=opts))
```

```python
import sys, os
sys.path.insert(0, os.path.dirname(__file__))
from asmlib import Asm
NAME = "parallel_sum__ssm_conv_s4d__moe_arch_mod__prompt"
KN = NAME + "_kernel"

WS_STAT = 0x1000
WS_KEY  = 0x5000
WS_FFN  = 0x8000
WS_XIN  = 0x40000
WS_DBG  = 0x800000
WS_SIZE = 0x1000000
RS   = 8704
RA   = 5984
BB   = 8*RA
XREV = BB + 8*RS
XCH  = 4576
KC   = XREV + 2*XCH + 64
KCS  = 4160
MISC = KC + 4*KCS
LDS_BYTES = MISC + 64
LOG2E = 0x3fb8aa3b
SPIN_MAX = 200000
OOB = 0x7fffffff

class DS:
    def __init__(self, a): self.a = a; self.q = []; self.done = 0
    def issue(self, text, tag=None):
        self.a(text); self.q.append(tag)
    def need(self, tag):
        idx = max((i for i, t in enumerate(self.q) if t == tag), default=-1)
        if idx < self.done: return
        n = len(self.q) - 1 - idx
        n = min(n, 14)
        self.a(f"s_waitcnt lgkmcnt({n})")
        self.done = len(self.q) - n

def gen(stamps=False, probe=None, opt=()):
    a = Asm()
    role = ["c"]
    def stamp(k, wait=False):
        if stamps or (probe and (k == 0 or (probe[0] == role[0] and probe[1] == k))):
            a(f"{'s_memtime' if 'konly' in opt else 's_memrealtime'} s[{64+2*k}:{65+2*k}]")
            if wait: a("s_waitcnt lgkmcnt(0)")
    def finish(lbl, n):
        if stamps or probe:
            a("s_waitcnt vmcnt(0)"); stamp(n - 1)
        if stamps:
            a("s_waitcnt lgkmcnt(0)")
            a(f"s_lshl_b32 s62, s2, 4\ns_add_u32 s62, s62, s40\ns_lshl_b32 s62, s62, 6\ns_add_u32 s62, s62, {WS_DBG}")
            a(f"s_mov_b32 s56, s34\ns_mov_b32 s57, s35\ns_mov_b32 s58, {WS_SIZE}\ns_mov_b32 s59, 0x20000")
            a("s_mov_b64 exec, 1\nv_mov_b32 v1, 0")
            for k in range(n):
                a(f"v_mov_b32 v2, s{64+2*k}\nbuffer_store_dword v2, v1, s[56:59], s62 offen offset:{4*k}")
        if probe and (role[0] != "k" or probe[0] == "k"):
            if role[0] == "k": a("s_barrier")
            a("s_waitcnt vmcnt(0) lgkmcnt(0)\ns_add_u32 s96, s64, 3000")
            if probe[0] == role[0]:
                lo, hi = probe[2]
                a(f"s_cmp_lt_u32 s40, {lo}\ns_cbranch_scc1 {lbl}\ns_cmp_gt_u32 s40, {hi}\ns_cbranch_scc1 {lbl}")
                a(f"s_sub_u32 s97, s{64+2*probe[1]}, s64\ns_lshl_b32 s97, s97, 2\ns_add_u32 s96, s96, s97")
            a(f"{lbl}:\ns_memrealtime s[98:99]\ns_waitcnt lgkmcnt(0)\ns_sub_u32 s98, s98, s96\ns_cmp_lt_i32 s98, 0\ns_cbranch_scc1 {lbl}")
        a("s_endpgm")
    def srd(base, ptr, size):
        if ptr != base: a(f"s_mov_b64 s[{base}:{base+1}], s[{ptr}:{ptr+1}]")
        a(f"s_mov_b32 s{base+2}, {size}\ns_mov_b32 s{base+3}, 0x20000")
    def cmul(d, x, y, t=None):
        t = d if t is None else t
        a(f"v_pk_mul_f32 v[{t}:{t+1}], v[{x}:{x+1}], v[{y}:{y+1}] op_sel_hi:[0,1]")
        a(f"v_pk_fma_f32 v[{d}:{d+1}], v[{x}:{x+1}], v[{y}:{y+1}], v[{t}:{t+1}] op_sel:[1,1,0] op_sel_hi:[1,0,1] neg_lo:[0,1,0]")
    def next_tag():
        a("s_mul_i32 s42, s42, 0x9e3779b1\ns_add_u32 s42, s42, 0x7f4a7c15")

    def optval(name, default):
        for o in opt:
            if o.startswith(name + "="): return int(o[len(name)+1:])
        return default
    NPRE = optval("npre", 2)
    MERGE = "merge" in opt
    PFE = "pfe" in opt
    PF = "nopf" not in opt
    PH = [[0, 1], [2, 3, 4], [5, 6, 7]]
    def pf_addr(vdst, t0, t1, widx, w_g, w_d):
        a(f"""
        v_and_b32 v{t0}, 3, v1
        v_lshrrev_b32 v{t1}, 2, v1
        s_lshl_b32 s51, s44, 4
        v_add_u32 v{t1}, s51, v{t1}
        v_lshl_add_u32 v{t0}, v{t0}, 3, s43
        s_movk_i32 s52, 128
        s_cmp_eq_u32 {widx}, {w_d}
        s_cselect_b32 s51, s52, 3584
        s_cselect_b32 s52, 57344, s52
        v_cmp_gt_u32 vcc, 28, v{t0}
        v_mul_u32_u24 v{t1}, s51, v{t1}
        v_mad_u32_u24 v{vdst}, s52, v{t0}, v{t1}
        v_bfrev_b32 v{t0}, -2
        v_cndmask_b32 v{vdst}, v{t0}, v{vdst}, vcc
        """)
    def pf_srd(b, widx, w_g, w_d):
        a(f"""
        s_cmp_eq_u32 {widx}, {w_d}
        s_cselect_b64 s[{b}:{b+1}], s[26:27], s[24:25]
        s_cmp_eq_u32 {widx}, {w_g}
        s_cselect_b64 s[{b}:{b+1}], s[22:23], s[{b}:{b+1}]
        s_mov_b32 s{b+2}, 1605632
        s_mov_b32 s{b+3}, 0x20000
        """)
    a(f"{KN}:")
    stamp(0)
    a(f"""
    s_load_dwordx16 s[4:19], s[0:1], 0
    s_load_dwordx8 s[20:27], s[0:1], 64
    s_load_dwordx2 s[28:29], s[0:1], 96
    s_load_dwordx2 s[34:35], s[0:1], 112
    v_lshrrev_b32 v2, 6, v0
    v_and_b32 v1, 63, v0
    s_and_b32 s43, s2, 7
    v_readfirstlane_b32 s40, v2
    s_lshr_b32 s44, s2, 3
    s_cmp_ge_u32 s44, 28
    s_cbranch_scc1 L_ffn
    s_mul_i32 s41, s43, 28
    s_add_u32 s41, s41, s44
    s_lshl_b32 s48, s41, 2
    v_lshrrev_b32 v5, 5, v1
    v_and_b32 v3, 31, v1
    s_cmp_lt_u32 s40, 8
    s_cbranch_scc1 L_xw
    """)
    role[0] = "k"
    a(f"""
    s_setprio 3
    s_sub_u32 s45, s40, 8
    s_lshr_b32 s46, s45, 2
    s_lshl_b32 s47, s41, 10
    s_sub_u32 s47, s47, 1024
    v_lshlrev_b32 v6, 1, v0
    v_add_u32 v6, s47, v6
    v_mov_b32 v16, 0
    v_mov_b32 v17, 0
    v_mov_b32 v18, 0
    v_mov_b32 v19, 0
    s_mul_i32 s49, s45, {RA}
    s_mov_b32 m0, s49
    v_mul_u32_u24 v30, 272, v3
    v_lshl_add_u32 v30, v5, 4, v30
    v_add_u32 v28, s49, v30
    s_mul_i32 s53, s45, {RS}
    v_add_u32 v30, s53, v30
    s_lshl_b32 s49, s45, 5
    v_add_u32 v7, s49, v3
    v_mul_u32_u24 v20, {4*RS}, v5
    v_lshl_add_u32 v20, v7, 2, v20
    v_add_u32 v20, {BB}, v20
    v_mul_u32_u24 v29, {2*KCS}, v5
    v_lshl_add_u32 v29, v7, 4, v29
    v_add_u32 v29, {KC+32}, v29
    v_and_b32 v8, 15, v1
    v_lshrrev_b32 v9, 4, v1
    s_and_b32 s50, s45, 3
    s_lshl_b32 s52, s50, 7
    s_mul_i32 s51, s46, {2*KCS}
    s_add_u32 s51, s51, s52
    s_add_u32 s51, s51, {KC+KCS+4}
    v_and_b32 v10, 1, v8
    v_mul_u32_u24 v10, {KCS}, v10
    v_sub_u32 v10, s51, v10
    v_lshrrev_b32 v11, 1, v8
    v_lshl_add_u32 v10, v11, 2, v10
    v_lshl_add_u32 v0, v9, 4, v10
    s_mul_i32 s51, s46, {XCH}
    s_add_u32 s51, s51, s52
    s_add_u32 s51, s51, {XREV+480}
    v_lshlrev_b32 v10, 5, v8
    v_sub_u32 v10, s51, v10
    v_lshl_add_u32 v2, v9, 4, v10
    s_mul_i32 s51, s45, 576
    v_lshl_add_u32 v10, v5, 6, s51
    v_lshl_add_u32 v31, v1, 3, v10
    """)
    if PF and PFE: pf_addr(25, 8, 9, "s45", 0, 2)
    a("s_mov_b32 s38, 229376\ns_mov_b32 s39, 0x20000\ns_mov_b32 s58, 229376\ns_mov_b32 s59, 0x20000")
    a("s_waitcnt lgkmcnt(0)")
    stamp(1)
    a("s_load_dword s54, s[14:15], s48")
    a("s_mov_b64 s[36:37], s[6:7]\nbuffer_load_short_d16_hi v16, v6, s[36:39], 0 offen")
    a("s_mov_b64 s[56:57], s[10:11]\ns_mov_b64 s[10:11], s[38:39]\nbuffer_load_short_d16_hi v17, v6, s[8:11], 0 offen")
    a("buffer_load_short_d16_hi v18, v6, s[56:59], 0 offen")
    a("s_mov_b64 s[4:5], s[12:13]\ns_mov_b64 s[6:7], s[38:39]\nbuffer_load_short_d16_hi v19, v6, s[4:7], 0 offen")
    a("s_branch L_kw")
    role[0] = "c"
    a("L_xw:")
    if "konly" in opt: a("s_endpgm")
    a(f"""
    s_setprio 2
    s_mul_i32 s45, s40, 28
    s_add_u32 s45, s45, s44
    s_lshl_b32 s46, s43, 7
    s_add_u32 s47, s45, s46
    s_mul_i32 s46, s47, 1792
    v_cmp_gt_u32 vcc, 28, v3
    v_lshlrev_b32 v3, 4, v3
    v_bfrev_b32 v9, -4
    v_mul_u32_u24 v4, 896, v5
    v_cndmask_b32 v3, v9, v3, vcc
    v_add_u32 v4, v4, v3
    v_bfrev_b32 v10, -2
    v_bfrev_b32 v25, -2
    s_and_b32 s49, s47, 1
    s_lshl_b32 s49, s49, 13
    s_lshr_b32 s50, s47, 1
    s_lshl_b32 s50, s50, 4
    s_add_u32 s58, s49, s50
    s_add_u32 s58, s58, {WS_STAT}
    s_lshl_b32 s59, s47, 3
    s_add_u32 s59, s59, {WS_KEY}
    s_lshl_b32 s49, s47, 1
    s_sub_u32 s49, 2047, s49
    v_sub_u32 v58, s49, v5
    v_mov_b32 v48, 0
    v_mov_b32 v49, 0
    v_mov_b32 v50, 0
    v_mov_b32 v51, 0
    s_mov_b32 s38, {WS_SIZE}
    s_mov_b32 s39, 0x20000
    s_mov_b32 s30, 1835008
    s_mov_b32 s31, 0x20000
    s_cmp_lt_u32 s40, 4
    s_cbranch_scc1 L_x_notilep
    v_and_b32 v7, 3, v1
    v_bfe_u32 v8, v1, 4, 1
    v_lshl_add_u32 v7, v8, 2, v7
    v_bfe_u32 v8, v1, 2, 2
    v_lshl_add_u32 v8, v5, 2, v8
    v_and_b32 v9, 3, v2
    v_lshl_add_u32 v8, v9, 3, v8
    v_mul_u32_u24 v9, 3584, v7
    v_lshl_add_u32 v9, v8, 2, v9
    v_mul_u32_u24 v10, 12288, v8
    v_lshl_add_u32 v10, v7, 4, v10
    s_mul_i32 s49, s44, 37
    s_lshr_b32 s49, s49, 8
    s_mul_i32 s50, s49, 7
    s_sub_u32 s50, s44, s50
    s_lshl_b32 s51, s43, 2
    s_add_u32 s49, s49, s51
    s_mul_i32 s53, s50, 393216
    s_mul_i32 s51, s49, 384
    s_add_u32 s53, s53, s51
    s_add_u32 s53, s53, {WS_XIN}
    s_mul_i32 s60, s49, 57344
    s_lshl_b32 s61, s50, 7
    s_add_u32 s60, s60, s61
    s_add_u32 s61, s60, 28672
    L_x_notilep:
    s_waitcnt lgkmcnt(0)
    """)
    stamp(1)
    a("""
    s_load_dword s42, s[34:35], 0
    s_load_dword s55, s[16:17], s48
    s_mov_b64 s[6:7], s[30:31]
    s_cmp_ge_u32 s45, 128
    s_cbranch_scc1 L_x_nost0
    buffer_load_dwordx4 v[32:35], v4, s[4:7], s46 offen
    buffer_load_dwordx4 v[36:39], v4, s[4:7], s46 offen offset:448
    """)
    srd(8, 20, 896)
    a("""
    buffer_load_dwordx4 v[40:43], v3, s[8:11], 0 offen
    buffer_load_dwordx4 v[44:47], v3, s[8:11], 0 offen offset:448
    L_x_nost0:
    s_cmp_lt_u32 s40, 4
    s_cbranch_scc1 L_x_notile0
    """)
    for k, r in enumerate([64, 65, 66, 72]):
        a(f"buffer_load_dword v{r}, v9, s[4:7], s60 offen offset:{k*896}")
    for k, r in enumerate([68, 69, 70, 73]):
        a(f"buffer_load_dword v{r}, v9, s[4:7], s61 offen offset:{k*896}")
    if PF and not PFE:
        pf_addr(25, 8, 9, "s40", 5, 7)
    a("L_x_notile0:")
    a(f"""
    s_mov_b64 s[36:37], s[34:35]
    v_lshrrev_b32 v11, 4, v0
    v_mul_u32_u24 v11, 384, v11
    v_and_b32 v12, 7, v0
    v_lshl_add_u32 v12, v12, 4, v11
    v_and_b32 v13, 15, v0
    v_lshl_add_u32 v11, v13, 4, v11
    v_cmp_lt_u32 s[56:57], 7, v13
    v_lshrrev_b32 v8, 2, v13
    v_lshrrev_b32 v9, 4, v1
    v_cmp_eq_u32 vcc, v8, v9
    v_lshlrev_b32 v8, 4, v1
    v_mov_b32 v9, 0x3f80
    v_lshlrev_b32 v8, v8, v9
    v_cndmask_b32 v8, 0, v8, vcc
    v_and_b32 v9, 2, v1
    v_cmp_eq_u32 vcc, 0, v9
    v_lshlrev_b32 v13, 4, v0
    v_lshlrev_b32 v7, 3, v0
    v_cndmask_b32 v28, 0, v8, vcc
    v_sub_u32 v29, v8, v28
    v_mov_b32 v30, v28
    v_mov_b32 v31, v29
    v_sub_u32 v7, {XREV+4088}, v7
    v_mul_u32_u24 v6, 3584, v0
    v_and_b32 v8, 3, v1
    v_lshrrev_b32 v24, 2, v1
    v_lshl_add_u32 v24, v8, 4, v24
    v_lshl_add_u32 v24, v9, 2, v24
    s_mul_i32 s51, s40, {8*576}
    v_lshl_add_u32 v24, v24, 3, s51
    s_cmp_gt_u32 s40, 2
    s_cbranch_scc1 L_x_nopad
    s_mul_i32 s51, s40, {XCH}
    s_add_u32 s51, s51, {XREV+4096}
    v_lshl_add_u32 v8, v1, 4, s51
    s_mov_b32 exec_hi, 0
    s_mov_b32 exec_lo, 0x3fffffff
    s_cmp_lt_u32 s40, 2
    s_cbranch_scc1 L_x_pad
    v_lshrrev_b32 v8, 1, v1
    v_mul_u32_u24 v8, {KCS-32}, v8
    v_lshl_add_u32 v8, v1, 4, v8
    v_add_u32 v8, {KC}, v8
    s_mov_b32 exec_lo, 0xff
    L_x_pad:
    ds_write_b128 v8, v[48:51]
    s_mov_b64 exec, -1
    L_x_nopad:
    s_mov_b32 s50, 0xffff0000
    s_mov_b32 s49, 0x3f803f80
    s_waitcnt lgkmcnt(0)
    """)
    next_tag()
    stamp(2)
    a(f"""
    v_mov_b32 v55, s42
    v_mov_b32 v57, s42
    s_cmp_lt_u32 s40, 4
    s_cbranch_scc1 L_x_w4
    s_lshl_b32 s51, s40, 2
    s_add_u32 s51, s51, {MISC}
    v_mov_b32 v8, s51
    ds_write_b32 v8, v55
    s_cmp_ge_u32 s45, 128
    s_cbranch_scc1 L_x_nost1
    s_waitcnt vmcnt(8)
    s_branch L_x_w4j
    L_x_w4:
    s_cmp_lg_u32 s40, 0
    s_cbranch_scc1 L_x_hsd
    v_and_b32 v8, 3, v1
    v_lshlrev_b32 v8, 2, v8
    v_add_u32 v8, {MISC+16}, v8
    s_mov_b32 s51, 0
    L_x_hs:
    ds_read_b32 v9, v8
    s_add_u32 s51, s51, 1
    s_cmp_ge_u32 s51, {SPIN_MAX}
    s_cbranch_scc1 L_x_hsd
    s_waitcnt lgkmcnt(0)
    v_cmp_ne_u32 vcc, s42, v9
    s_cbranch_vccnz L_x_hs
    L_x_hsd:
    s_waitcnt vmcnt(0)
    L_x_w4j:
    """)
    stamp(3)
    for i in range(8):
        a(f"""
        v_dot2c_f32_bf16 v48, s49, v{32+i}
        v_dot2c_f32_bf16 v49, v{32+i}, v{32+i}
        v_dot2c_f32_bf16 v50, v{32+i}, v{40+i}
        v_dot2c_f32_bf16 v51, s49, v{40+i}
        """)
    for sh in (1, 2, 4, 8):
        for r in (48, 49, 50, 51):
            a(f"v_add_f32_dpp v{r}, v{r}, v{r} row_shr:{sh} row_mask:0xf bank_mask:0xf bound_ctrl:0")
    for r in (48, 49, 50, 51):
        a(f"v_add_f32_dpp v{r}, v{r}, v{r} row_bcast:15 row_mask:0xa bank_mask:0xf")
    a(f"""
    v_mul_f32 v48, 0x3b124925, v48
    v_mul_f32 v49, 0x3b124925, v49
    v_fma_f32 v49, -v48, v48, v49
    v_max_f32 v49, 0, v49
    v_cvt_pk_bf16_f32 v52, v49, v48
    v_lshlrev_b32 v49, 16, v52
    v_add_f32 v49, 0x3727c5ac, v49
    v_cvt_pk_bf16_f32 v49, v49, v49
    v_lshlrev_b32 v49, 16, v49
    v_sqrt_f32 v49, v49
    v_and_b32 v54, 0xffff0000, v52
    v_cvt_pk_bf16_f32 v49, v49, v49
    v_lshlrev_b32 v49, 16, v49
    v_rcp_f32 v53, v49
    v_fma_f32 v50, -v54, v51, v50
    v_mov_b32_dpp v48, v54 row_bcast:31 row_mask:0xc bank_mask:0xf
    v_mul_f32 v50, v50, v53
    v_mov_b32_dpp v52, v53 row_bcast:31 row_mask:0xc bank_mask:0xf
    v_lshrrev_b32 v48, 16, v48
    v_cvt_pk_bf16_f32 v50, v50, v50
    v_or_b32 v54, v54, v48
    s_mov_b32 exec_lo, 0
    s_brev_b32 exec_hi, 1
    buffer_store_dwordx4 v[52:55], off, s[36:39], s58 sc1
    s_mov_b64 exec, -1
    v_ashrrev_i32 v51, 31, v50
    v_or_b32 v51, 0x80000000, v51
    v_xor_b32 v50, v50, v51
    v_and_or_b32 v56, v50, s50, v58
    v_max_u32_dpp v56, v56, v56 row_bcast:31 row_mask:0xc bank_mask:0xf
    s_mov_b32 exec_lo, 0
    s_brev_b32 exec_hi, 1
    buffer_store_dwordx2 v[56:57], off, s[36:39], s59 sc1
    s_mov_b64 exec, -1
    s_cmp_lt_u32 s40, 4
    s_cbranch_scc1 L_x_notile1
    s_waitcnt vmcnt(2)
    s_branch L_x_st1j
    L_x_nost1:
    s_waitcnt vmcnt(0)
    L_x_st1j:
    v_mov_b32 v67, s42
    v_mov_b32 v71, s42
    v_mov_b32 v75, s42
    buffer_store_dwordx4 v[64:67], v10, s[36:39], s53 offen sc1
    buffer_store_dwordx4 v[68:71], v10, s[36:39], s53 offen offset:128 sc1
    buffer_store_dwordx4 v[72:75], v10, s[36:39], s53 offen offset:256 sc1
    """)
    if PF and not PFE:
        a("s_cmp_eq_u32 s40, 4\ns_cbranch_scc1 L_x_notile1")
        pf_srd(12, "s40", 5, 7)
        a("buffer_load_dword v26, v25, s[12:15], 0 offen")
    a("L_x_notile1:")
    stamp(4)
    a(f"""
    s_lshl_b32 s49, s55, 16
    s_and_b32 s50, s55, 0xffff0000
    v_mov_b32 v14, 1.0
    v_add_f32 v15, s50, v14
    v_add_f32 v14, s49, v14
    s_mul_i32 s51, s41, 12288
    s_add_u32 s51, s51, {WS_XIN}
    s_mov_b32 s52, {WS_STAT}
    s_mov_b32 s53, {WS_STAT+8192}
    s_mov_b32 s49, 0
    """)
    def poll_loads():
        a("""
        buffer_load_dwordx4 v[112:115], v11, s[36:39], s51 offen sc1
        buffer_load_dwordx4 v[116:119], v12, s[36:39], s51 offen offset:256 sc1
        buffer_load_dwordx4 v[120:123], v13, s[36:39], s52 offen sc1
        buffer_load_dwordx4 v[124:127], v13, s[36:39], s53 offen sc1
        """)
    if "pollmid" in opt:
        a("s_barrier"); stamp(11); poll_loads(); a("s_barrier"); stamp(5)
    elif "pollb1" in opt:
        a("s_barrier"); stamp(5); poll_loads()
    else:
        a("s_waitcnt vmcnt(0)"); stamp(11); poll_loads(); a("s_barrier"); stamp(5)
    if not MERGE:
        a("s_barrier")
        stamp(6)
    a(f"""
    L_x_poll:
    s_waitcnt vmcnt(0)
    v_xor_b32 v8, s42, v115
    v_bitop3_b32 v8, v119, s42, v8 bitop3:0xbe
    v_bitop3_b32 v8, v123, s42, v8 bitop3:0xbe
    v_bitop3_b32 v8, v127, s42, v8 bitop3:0xbe
    v_cmp_ne_u32 vcc, 0, v8
    s_cbranch_vccz L_x_polled
    s_add_u32 s49, s49, 1
    s_cmp_ge_u32 s49, {SPIN_MAX}
    s_cbranch_scc1 L_x_polled
    s_mov_b64 exec, vcc
    """)
    poll_loads()
    a("""
    s_branch L_x_poll
    L_x_polled:
    s_mov_b64 exec, -1
    """)
    stamp(7)
    a("v_cndmask_b32 v115, v116, v117, s[56:57]")
    a("""
    v_lshlrev_b32 v8, 16, v122
    v_and_b32 v9, 0xffff0000, v122
    v_lshlrev_b32 v10, 16, v126
    v_and_b32 v11, 0xffff0000, v126
    """)
    for r in range(4):
        a(f"v_lshlrev_b32 v{64+2*r}, 16, v{112+r}\nv_and_b32 v{65+2*r}, 0xffff0000, v{112+r}")
    for r in range(4):
        e = r & 1; mm = 8 + 2*(r >> 1)
        a(f"v_pk_add_f32 v[{32+2*r}:{33+2*r}], v[{64+2*r}:{65+2*r}], v[{mm}:{mm+1}] op_sel:[0,{e}] op_sel_hi:[1,{e}] neg_lo:[0,1] neg_hi:[0,1]")
    for r in range(4):
        e = r & 1; rs = 120 + 4*(r >> 1)
        a(f"v_pk_mul_f32 v[{32+2*r}:{33+2*r}], v[{32+2*r}:{33+2*r}], v[{rs}:{rs+1}] op_sel:[0,{e}] op_sel_hi:[1,{e}]")
    a(f"""
    v_cvt_pk_bf16_f32 v40, v38, v36
    v_cvt_pk_bf16_f32 v41, v34, v32
    ds_write_b64 v7, v[40:41]
    v_cvt_pk_bf16_f32 v42, v39, v37
    v_cvt_pk_bf16_f32 v43, v35, v33
    ds_write_b64 v7, v[42:43] offset:{XCH}
    s_waitcnt lgkmcnt(0)
    s_barrier
    """)
    stamp(8)
    for r in range(4):
        for ch in range(2):
            a(f"v_fma_f32 v{16+4*ch+r}, v{32+2*r+ch}, v{14+ch}, v{64+2*r+ch}")
    a(f"""
    v_mul_u32_u24 v8, 3584, v1
    s_lshl_b32 s51, s41, 4
    s_add_u32 s51, s51, {WS_FFN}
    v_mov_b32 v52, 0
    v_mov_b32 v53, 0
    s_barrier
    s_cmp_lt_u32 s40, {PH[1][0]}
    s_cbranch_scc1 L_x_epi
    s_barrier
    s_cmp_lt_u32 s40, {PH[2][0]}
    s_cbranch_scc1 L_x_epi
    s_barrier
    L_x_epi:
    """)
    stamp(9, True)
    order = [0, 1, 4, 5, 2, 3, 6, 7]
    for i, kw in enumerate(order):
        a(f"ds_read_b64 v[{32+2*i}:{33+2*i}], v24 offset:{kw*576}")
    for i in range(4):
        a(f"s_waitcnt lgkmcnt({6-2*i})")
        c = 16 + 4*(i & 1)
        a(f"v_mfma_f32_16x16x32_bf16 v[{c}:{c+3}], v[28:31], v[{32+4*i}:{35+4*i}], v[{c}:{c+3}]")
    for r in range(4):
        a(f"v_cvt_pk_bf16_f32 v{48+r}, v{16+r}, v{20+r}")
        a(f"buffer_store_dword v{48+r}, v6, s[28:31], s48 offen offset:{896*r}")
    stamp(10)
    a(f"""
    s_cmp_ge_u32 s40, {PH[2][0]}
    s_cbranch_scc1 L_x_nofp
    s_barrier
    s_cmp_ge_u32 s40, {PH[1][0]}
    s_cbranch_scc1 L_x_nofp
    s_barrier
    s_cmp_lg_u32 s40, 0
    s_cbranch_scc1 L_x_nofp
    s_mov_b32 s49, 0
    s_mov_b32 exec_hi, 0xffffff
    L_x_fpoll:
    buffer_load_dwordx4 v[52:55], v8, s[36:39], s51 offen sc1
    s_waitcnt vmcnt(0)
    v_cmp_ne_u32 vcc, s42, v55
    s_cbranch_vccz L_x_fpolled
    s_add_u32 s49, s49, 1
    s_cmp_ge_u32 s49, {SPIN_MAX}
    s_cbranch_scc1 L_x_fpolled
    s_mov_b64 exec, vcc
    s_branch L_x_fpoll
    L_x_fpolled:
    s_mov_b64 exec, -1
    v_readfirstlane_b32 s52, v54
    """)
    stamp(13)
    for sh in (1, 2, 4, 8):
        for r in (52, 53):
            a(f"v_add_f32_dpp v{r}, v{r}, v{r} row_shr:{sh} row_mask:0xf bank_mask:0xf bound_ctrl:0")
    for r in (52, 53): a(f"v_add_f32_dpp v{r}, v{r}, v{r} row_bcast:15 row_mask:0xa bank_mask:0xf")
    for r in (52, 53): a(f"v_add_f32_dpp v{r}, v{r}, v{r} row_bcast:31 row_mask:0xc bank_mask:0xf")
    a(f"""
    v_mov_b32 v54, s52
    v_mov_b32 v8, {MISC}
    s_mov_b32 exec_lo, 0
    s_brev_b32 exec_hi, 1
    ds_write_b128 v8, v[52:55]
    s_cmp_lg_u32 s41, 0
    s_cbranch_scc1 L_x_noep
    v_mov_b32 v9, s42
    buffer_store_dword v9, off, s[36:39], 0
    L_x_noep:
    s_mov_b64 exec, -1
    s_waitcnt lgkmcnt(0)
    L_x_nofp:
    s_barrier
    v_mov_b32 v8, {MISC}
    ds_read_b128 v[52:55], v8
    s_waitcnt lgkmcnt(0)
    v_readfirstlane_b32 s52, v54
    v_lshrrev_b32 v9, 2, v54
    v_cmp_eq_u32 vcc, v9, v0
    s_and_saveexec_b64 s[60:61], vcc
    s_cbranch_execz L_x_end
    s_bitcmp1_b32 s52, 0
    s_cselect_b64 vcc, -1, 0
    v_cndmask_b32 v16, v16, v17, vcc
    v_cndmask_b32 v18, v18, v19, vcc
    v_cndmask_b32 v20, v20, v21, vcc
    v_cndmask_b32 v22, v22, v23, vcc
    s_bitcmp1_b32 s52, 1
    s_cselect_b64 vcc, -1, 0
    v_cndmask_b32 v16, v16, v18, vcc
    v_cndmask_b32 v17, v20, v22, vcc
    v_pk_add_f32 v[16:17], v[16:17], v[52:53]
    v_mul_u32_u24 v9, 896, v54
    v_cvt_pk_bf16_f32 v16, v16, v17
    buffer_store_dword v16, v9, s[28:31], s48 offen
    L_x_end:
    """)
    finish("L_x_probe", 15)
    role[0] = "k"
    a("L_kw:")
    if PF and PFE:
        a("s_cmp_gt_u32 s45, 2\ns_cbranch_scc1 L_k_nopf")
        pf_srd(28, "s45", 0, 2)
        a("buffer_load_dword v26, v25, s[28:31], 0 offen\nL_k_nopf:")
    a(f"""
    s_setprio 1
    s_lshl_b32 s49, s46, 4
    s_sub_u32 s49, 16, s49
    v_mov_b32 v4, {LOG2E}
    s_waitcnt lgkmcnt(0)
    s_lshl_b32 s54, s54, s49
    s_and_b32 s54, s54, 0xffff0000
    v_mul_f32 v4, s54, v4
    v_exp_f32 v4, v4
    """)
    stamp(2)
    if PF and PFE:
        a("s_cmp_gt_u32 s45, 2\ns_cbranch_scc1 L_k_w0\ns_waitcnt vmcnt(1)\ns_branch L_k_w1\nL_k_w0:\ns_waitcnt vmcnt(0)\nL_k_w1:")
    else: a("s_waitcnt vmcnt(0)")
    stamp(3, True)
    a(f"""
    v_mul_f32 v16, {LOG2E}, v16
    v_exp_f32 v16, v16
    v_mov_b32 v8, 0x3f80
    v_cvt_pk_bf16_f32 v4, v4, v16
    ds_write_addtid_b32 v8 offset:0
    v_and_b32 v16, 0xffff0000, v4
    v_lshlrev_b32 v4, 16, v4
    v_mul_f32 v16, v16, v4
    v_mul_f32 v17, v17, v4
    v_add_f32 v4, v4, v4
    v_mul_f32 v16, 0xbfb8aa3b, v16
    v_mul_f32 v17, 0.15915494, v17
    v_mul_f32 v18, v18, v4
    v_mul_f32 v19, -v19, v4
    """)
    Z1, W8, ZZ = 32, 14, 36
    a(f"""
    v_fract_f32 v7, v17
    v_mul_f32 v9, 0x43800000, v17
    v_exp_f32 v6, v16
    v_mul_f32 v8, 0x43800000, v16
    v_fract_f32 v9, v9
    v_cos_f32 v{Z1}, v7
    v_sin_f32 v{Z1+1}, v7
    v_exp_f32 v8, v8
    v_cos_f32 v{ZZ}, v9
    v_sin_f32 v{ZZ+1}, v9
    """)
    if "w8direct" in opt:
        a(f"""
        v_mul_f32 v11, 0xc1000000, v17
        v_mul_f32 v10, 0x41000000, v16
        v_fract_f32 v11, v11
        v_exp_f32 v10, v10
        v_cos_f32 v{W8}, v11
        v_sin_f32 v{W8+1}, v11
        """)
    a(f"""
    v_pk_mul_f32 v[{Z1}:{Z1+1}], v[{Z1}:{Z1+1}], v[6:7] op_sel_hi:[1,0]
    v_pk_mul_f32 v[{ZZ}:{ZZ+1}], v[{ZZ}:{ZZ+1}], v[8:9] op_sel_hi:[1,0]
    """)
    if "w8direct" in opt: a(f"v_pk_mul_f32 v[{W8}:{W8+1}], v[{W8}:{W8+1}], v[10:11] op_sel_hi:[1,0]")
    a("s_setprio 0\n.p2align 3")
    slot_of = {0:0, 256:1, 512:2, 768:3, 1024:4, 1280:5, 1536:6, 1792:7, 2048:8, 1:9, 4:10, 260:11, 516:12, 772:13,
               2:14, 258:15, 6:16, 262:17, 3:18, 5:19, 7:20}
    tcount = [0]
    def rowoff(h):
        s = slot_of[h]; m, e = s >> 1, s & 1
        return (8*(m >> 2) + 4*e + (m & 3)) * 272
    z = {1: Z1, 256: ZZ}
    seq = [(2,1,1,1), (512,256,256,1), (3,2,1,1), (768,512,256,1), (4,2,2,1), (1024,512,512,1), (6,4,2,1), (5,4,1,0), (7,4,3,0),
           (258,256,2,0), (260,256,4,0), (262,256,6,0), (516,512,4,0), (772,768,4,0), (1280,1024,256,0), (1536,1024,512,0), (1792,1024,768,0), (2048,1024,1024,0)]
    pend = [1, 256]
    nxt = 38
    for n, (h, p, q, keep) in enumerate(seq):
        hp = pend.pop(0); t = 8 + (n & 3)
        a(f"v_cvt_pk_bf16_f32 v{t}, v{z[hp]}, v{z[hp]+1}")
        if keep: d = nxt; nxt += 2
        else: d = 56 + 2*(n & 3)
        cmul(d, z[p], z[q]); z[h] = d; pend.append(h)
        a(f"ds_write_addtid_b32 v{t} offset:{rowoff(hp)}")
    hp = pend.pop(0)
    a(f"v_cvt_pk_bf16_f32 v10, v{z[hp]}, v{z[hp]+1}")
    if "w8direct" not in opt:
        x = z[4]
        a(f"v_pk_mul_f32 v[{W8}:{W8+1}], v[{x}:{x+1}], v[{x}:{x+1}] op_sel_hi:[0,1] neg_hi:[0,1]")
        a(f"v_pk_fma_f32 v[{W8}:{W8+1}], v[{x}:{x+1}], v[{x}:{x+1}], v[{W8}:{W8+1}] op_sel:[1,1,0] op_sel_hi:[1,0,1] neg_lo:[0,1,0] neg_hi:[0,1,0]")
    a(f"ds_write_addtid_b32 v10 offset:{rowoff(hp)}")
    hp = pend.pop(0)
    a(f"v_cvt_pk_bf16_f32 v11, v{z[hp]}, v{z[hp]+1}")
    a(f"ds_write_addtid_b32 v11 offset:{rowoff(hp)}")
    if "konly" in opt: stamp(7)
    a("s_mov_b32 m0, s53\ns_mov_b32 s49, 2\n.p2align 3\nL_k_bchain:")
    for j in range(16):
        t = 8 + (j & 3)
        a(f"v_cvt_pk_bf16_f32 v{t}, v18, v19")
        cmul(18, 18, W8, 12)
        a(f"ds_write_addtid_b32 v{t} offset:{BB+j*272}")
    a(f"""
    s_add_u32 m0, m0, {16*272}
    s_sub_u32 s49, s49, 1
    s_cmp_lg_u32 s49, 0
    s_cbranch_scc1 L_k_bchain
    s_mov_b32 m0, s53
    """)
    if "pollmid" in opt: a("s_barrier")
    stamp(4, True)
    ds = DS(a)
    def kread(ks):
        ds.issue(f"ds_read_b128 v[{64+4*ks}:{67+4*ks}], v28 offset:{32*ks}", ks)
        ds.issue(f"ds_read_b128 v[{32+4*ks}:{35+4*ks}], v30 offset:{BB+32*ks}", ks)
    for ks in range(4): kread(ks)
    a("v_add_u32 v21, 4, v20\nv_add_u32 v22, 128, v20\nv_cmp_eq_u32 vcc, 0, v3\nv_add_u32 v23, 2556, v20\nv_and_b32 v24, 1, v3\nv_cndmask_b32 v23, v20, v23, vcc\nv_cmp_eq_u32 s[56:57], 1, v24")
    for ks in range(8):
        ds.need(ks)
        c = "0" if ks == 0 else "v[96:111]"
        a(f"v_mfma_f32_32x32x16_bf16 v[96:111], v[{64+4*ks}:{67+4*ks}], v[{32+4*ks}:{35+4*ks}], {c}")
        if ks < 4: kread(ks + 4)
    a("v_add_u32 v3, 1024, v0\nv_add_u32 v4, 2048, v0\nv_add_u32 v5, 3072, v0\nv_mov_b32 v6, v31")
    for m in range(11):
        a(f"ds_write_addtid_b32 v{96+m} offset:{BB+m*256}")
    a("s_cmp_gt_u32 s45, 1\ns_waitcnt lgkmcnt(0)\ns_barrier")
    stamp(5, True)
    SL = {0:(20,0), 8:(21,0), 1:(22,4), 4:(20,5), 2:(20,7), 6:(20,8), 3:(20,9), 5:(22,9), 7:(20,10), "p":(23,0)}
    def expand(vals, kk, prev, mid=None):
        ds = DS(a); reg = {}
        for i, v in enumerate(vals):
            ad, o = SL[v]; r = 32 + 4*i; reg[v] = r
            ds.issue(f"ds_read2st64_b32 v[{r}:{r+1}], v{ad} offset0:{o} offset1:{o+34}", v)
            ds.issue(f"ds_read2st64_b32 v[{r+2}:{r+3}], v{ad} offset0:{o+68} offset1:{o+102}", v)
        for v in vals:
            ds.need(v); r = reg[v]
            a(f"v_pk_add_f32 v[{r}:{r+1}], v[{r}:{r+1}], v[{r+2}:{r+3}]")
            a(f"v_add_f32 v{r}, v{r}, v{r+1}")
        if mid: mid(reg)
        seqv = [prev] + kk
        for d in range(4): a(f"v_cvt_pk_bf16_f32 v{68+d}, v{reg[seqv[2*d+1]]}, v{reg[seqv[2*d+2]]}")
        a("ds_write_b128 v29, v[68:71]")
        for d in (1, 2, 3, 0): a(f"v_cvt_pk_bf16_f32 v{72+d}, v{reg[seqv[2*d]]}, v{reg[seqv[2*d+1]]}")
    a("s_cbranch_scc1 L_k_e23\ns_cmp_eq_u32 s45, 1\ns_cbranch_scc1 L_k_e1")
    def mid0(reg):
        reg["p"] = 64
        a(f"v_mov_b32_dpp v64, v{reg[7]} wave_shr:1 row_mask:0xf bank_mask:0xf bound_ctrl:0")
        a("v_writelane_b32 v64, 0, 32")
    expand([7, 0, 1, 2, 3, 4, 5, 6], [0, 1, 2, 3, 4, 5, 6, 7], "p", mid0)
    a("s_branch L_k_ej\nL_k_e1:")
    expand([0, 2, 4, 6, 8, "p"], [0, 0, 2, 4, 4, 4, 6, 8], "p")
    a("s_branch L_k_ej\nL_k_e23:\ns_cmp_gt_u32 s45, 3\ns_cbranch_scc1 L_k_e4")
    expand([0, 4, 8], [0, 0, 0, 4, 4, 4, 8, 8], 0)
    a("s_branch L_k_ej\nL_k_e4:")
    def mid4(reg):
        reg["m"] = 64
        a(f"v_cndmask_b32 v64, v{reg[0]}, v{reg[8]}, s[56:57]")
    expand([0, 8], [0, 0, 0, 0, "m", 8, 8, 8], 0, mid4)
    a(f"L_k_ej:\nds_write_b128 v29, v[72:75] offset:{KCS}")
    a("s_waitcnt lgkmcnt(0)\ns_barrier")
    stamp(6, True)
    AAD = [0, 3, 4, 5]
    A = lambda ri, s: 64 + 32*ri + 4*s
    ds = DS(a)
    def ldA(ri, s, half):
        o = 128*(s & 1) + 16*ri + 2*half; r = A(ri, s) + 2*half
        ds.issue(f"ds_read2_b32 v[{r}:{r+1}], v{AAD[s>>1]} offset0:{o} offset1:{o+1}", ("A", ri, s))
    haveA = set()
    if not MERGE:
        for s in range(NPRE):
            for ri in range(2):
                ldA(ri, s, 0); ldA(ri, s, 1); haveA.add((ri, s))
        a("s_barrier")
        stamp(8, True)
    NS = 7
    slot_reg = lambda i: 12 + 4*i
    accreg = {0: 40, 1: 44, 2: 48, 3: 52, 4: 56, 5: 60, 6: 40, 7: 44}
    if NPRE >= 5 and not MERGE:
        ph_order = [
            [(0,0),(1,0),(0,1),(1,1)],
            [(0,0),(1,0),(0,1),(1,1),(0,2),(1,2),(0,3),(1,3),(0,4),(1,4)],
            [(1,4),(0,4),(1,3),(0,3),(1,2),(0,2),(0,1),(1,1),(0,0),(1,0),(0,5),(1,5),(0,6),(1,6),(0,7),(1,7)]]
    else:
        ph_order = [
            [(0,0),(1,0),(0,1),(1,1)],
            [(0,3),(1,3),(0,4),(1,4),(0,2),(1,2),(0,1),(1,1),(0,0),(1,0)],
            [(0,2),(1,2),(0,1),(1,1),(0,0),(1,0),(0,3),(1,3),(0,4),(1,4),(0,5),(1,5),(0,6),(1,6),(0,7),(1,7)]]
    mf = []
    uses = []
    for p, lst in enumerate(ph_order):
        for b in lst:
            uses.append(b)
            for J in PH[p]:
                if J - b[1] >= 0: mf.append((p, b[0], b[1], J, len(uses) - 1))
    loads = []
    resident_plan = {}
    seenA = set(haveA)
    lastuse = -1
    for (p, ri, u, J, ui) in mf:
        if ui != lastuse: loads.append(("B", (ri, u), ui)); lastuse = ui
        if (ri, J - u) not in seenA:
            seenA.add((ri, J - u)); loads += [("A", (ri, J - u), 0), ("A", (ri, J - u), 1)]
    resident = {}; free = list(range(NS))
    def next_use(b, after):
        for i in range(after, len(uses)):
            if uses[i] == b: return i
        return 10**9
    def pump(cur, maxn):
        n = 0; i = 0
        while i < len(loads) and n < maxn:
            kind, b, x = loads[i]
            if kind == "A":
                ldA(b[0], b[1], x); loads.pop(i); n += 1; continue
            if b in resident:
                if next_use(b, cur) == x or True:
                    if x <= cur: loads.pop(i)
                    else: i += 1
                    continue
            if not free:
                nu, y = max((next_use(y, cur), y) for y in resident)
                if nu <= x or (nu < 10**9 and x - cur > 2):
                    i += 1; continue
                free.append(resident.pop(y))
            sl = free.pop(0); resident[b] = sl
            ds.issue(f"ds_read_b128 v[{slot_reg(sl)}:{slot_reg(sl)+3}], v2 offset:{512*(7-b[1])+64*b[0]}", ("B", b))
            loads.pop(i); n += 1
    pump(0, 12 if MERGE else 7)
    started = set(); pending = []
    def phase_end(p):
        def w():
            for J in PH[p]:
                t = 8 + 2*(J & 1)
                a(f"v_cvt_pk_bf16_f32 v{t}, v{accreg[J]}, v{accreg[J]+1}\nv_cvt_pk_bf16_f32 v{t+1}, v{accreg[J]+2}, v{accreg[J]+3}")
                ds.issue(f"ds_write_b64 v6, v[{t}:{t+1}] offset:{J*8*576}", ("Y", p))
        def bar():
            ds.need(("Y", p)); a("s_barrier")
        return w, bar
    for n, (p, ri, u, J, ui) in enumerate(mf):
        b = (ri, u); s = J - u
        while b not in resident or any(k == "A" and bb == (ri, s) for k, bb, _ in loads): pump(ui, 1)
        ds.need(("B", b)); ds.need(("A", ri, s))
        sl = resident[b]
        c = f"v[{accreg[J]}:{accreg[J]+3}]" if J in started else "0"
        started.add(J)
        a(f"v_mfma_f32_16x16x32_bf16 v[{accreg[J]}:{accreg[J]+3}], v[{A(ri,s)}:{A(ri,s)+3}], v[{slot_reg(sl)}:{slot_reg(sl)+3}], {c}")
        last_of_use = n + 1 == len(mf) or mf[n+1][4] != ui
        for pe in pending: pe[0] -= 1
        hold = bool(pending) or (n + 1 < len(mf) and p == 0)
        while pending and pending[0][0] <= 0: pending.pop(0)[1]()
        if not hold: pump(ui + 1 if last_of_use else ui, optval("pump", 2))
        if n + 1 == len(mf) or mf[n+1][0] != p:
            w, bar = phase_end(p)
            if n + 1 == len(mf): w(); bar()
            else: pending += [[optval("wd", 2), w], [optval("bd", 4), bar]]
    assert len(mf) == 72 and not pending
    finish("L_k_probe", 10)
    role[0] = "f"
    F_XS, F_PART, F_MISC = 0, 1024, 5120
    G, GT, D, DT = 32, 64, 96, 32
    a(f"""
    L_ffn:
    s_cmp_ge_u32 s2, {0 if "konly" in opt else 252}
    s_cbranch_scc1 L_exit
    s_sub_u32 s41, s2, 224
    v_and_b32 v3, 15, v1
    v_lshrrev_b32 v4, 4, v1
    v_lshrrev_b32 v5, 3, v3
    v_lshl_add_u32 v5, v5, 2, v4
    v_mul_u32_u24 v5, 28672, v5
    v_and_b32 v6, 7, v3
    v_lshl_add_u32 v5, v6, 4, v5
    s_sub_u32 s53, s40, 1
    s_lshr_b32 s56, s53, 1
    s_mul_i32 s44, s56, 229376
    s_lshl_b32 s45, s41, 7
    s_add_u32 s44, s44, s45
    s_add_u32 s45, s44, 7168
    s_add_u32 s46, s44, 14336
    s_add_u32 s47, s44, 21504
    s_and_b32 s57, s53, 1
    s_waitcnt lgkmcnt(0)
    """)
    stamp(1)
    a("""
    s_load_dword s42, s[34:35], 0
    s_cselect_b64 s[8:9], s[24:25], s[22:23]
    s_mov_b32 s10, 1605632
    s_mov_b32 s11, 0x20000
    s_cmp_ge_u32 s53, 14
    s_cbranch_scc1 L_f_nogu
    """)
    for r in range(8):
        a(f"buffer_load_dwordx4 v[{G+4*r}:{G+4*r+3}], v5, s[8:11], s{44+(r>>1)} offen offset:{3584*(r&1)}")
    a("L_f_nogu:")
    srd(12, 26, 1605632); srd(36, 34, WS_SIZE); srd(4, 4, 1835008)
    a(f"""
    s_and_b32 s50, s40, 3
    s_bfe_u32 s51, s40, 0x10002
    s_lshl_b32 s48, s50, 4
    v_add_u32 v7, s48, v3
    v_mul_u32_u24 v8, 7168, v4
    v_cmp_gt_u32 vcc, 56, v7
    v_lshl_add_u32 v8, v7, 4, v8
    v_bfrev_b32 v9, -2
    v_lshl_add_u32 v10, v7, 2, v4
    v_lshlrev_b32 v10, 4, v10
    v_cndmask_b32 v8, v9, v8, vcc
    v_cndmask_b32 v10, v9, v10, vcc
    s_lshl_b32 s52, s41, 1
    s_add_u32 s52, s52, s51
    s_mul_i32 s48, s52, 28672
    s_add_u32 s49, s48, 3584
    s_mul_i32 s52, s52, 3584
    s_add_u32 s52, s52, {WS_FFN}
    s_cmp_lt_u32 s40, 8
    s_cbranch_scc1 L_f_nod
    """)
    for r in range(8):
        a(f"buffer_load_dwordx4 v[{D+4*r}:{D+4*r+3}], v8, s[12:15], s{48+(r>>2)} offen offset:{896*(r&3)}")
    a(f"""
    L_f_nod:
    s_mov_b32 s54, 0x05040100
    s_mov_b32 s55, 0x07060302
    v_and_b32 v14, 1, v3
    v_lshlrev_b32 v14, 6, v14
    v_lshl_add_u32 v14, v4, 4, v14
    s_lshl_b32 s44, s56, 7
    v_add_u32 v14, s44, v14
    v_lshl_add_u32 v15, v6, 2, v4
    v_lshlrev_b32 v15, 4, v15
    s_lshl_b32 s44, s56, 9
    s_lshl_b32 s45, s57, 2
    s_add_u32 s44, s44, s45
    s_add_u32 s44, s44, {F_PART}
    v_add_u32 v15, s44, v15
    v_lshl_add_u32 v16, v4, 3, v6
    v_lshlrev_b32 v16, 3, v16
    s_lshl_b32 s44, s51, 8
    v_add_u32 v16, s44, v16
    v_mov_b32 v17, {F_MISC}
    s_waitcnt lgkmcnt(0)
    """)
    next_tag()
    def transp(src, dst):
        for rp in range(4):
            for d in range(4):
                x, y = src + 8*rp + d, src + 8*rp + 4 + d
                a(f"v_perm_b32 v{dst+8*d+rp}, v{y}, v{x}, s54\nv_perm_b32 v{dst+8*d+4+rp}, v{y}, v{x}, s55")
    a("""
    s_cmp_eq_u32 s40, 0
    s_cbranch_scc1 L_f_router
    s_cmp_lt_u32 s40, 8
    s_cbranch_scc1 L_f_w0
    s_waitcnt vmcnt(8)
    s_branch L_f_w0j
    L_f_w0:
    s_waitcnt vmcnt(0)
    L_f_w0j:
    """)
    transp(G, GT)
    stamp(2)
    a("s_cmp_lt_u32 s40, 8\ns_cbranch_scc1 L_f_join\ns_waitcnt vmcnt(0)")
    transp(D, DT)
    stamp(3)
    a("s_branch L_f_join")
    a(f"""
    L_f_router:
    s_setprio 3
    v_lshlrev_b32 v18, 4, v1
    s_mov_b32 s44, {WS_KEY}
    s_mov_b32 s45, {WS_KEY+4096}
    s_mov_b32 s46, 0
    s_mov_b32 s47, {WS_KEY+8192-16}
    L_f_kpre:
    buffer_load_dwordx4 v[32:35], off, s[36:39], s47 sc1
    s_add_u32 s46, s46, 1
    s_cmp_ge_u32 s46, {SPIN_MAX}
    s_cbranch_scc1 L_f_kpoll
    s_waitcnt vmcnt(0)
    v_cmp_ne_u32 vcc, s42, v35
    s_cbranch_vccnz L_f_kpre
    """)
    stamp(2)
    a("L_f_kpoll:")
    for i in range(8):
        a(f"buffer_load_dwordx4 v[{32+4*i}:{35+4*i}], v18, s[36:39], s{44+(i>>2)} offen offset:{1024*(i&3)} sc1")
    a("v_mov_b32 v19, 0\nv_mov_b32 v20, 0")
    for i in range(8):
        a(f"s_waitcnt vmcnt({7-i})")
        a(f"v_bitop3_b32 v19, v{33+4*i}, s42, v19 bitop3:0xbe")
        a(f"v_max3_u32 v20, v{32+4*i}, v{34+4*i}, v20")
        a(f"v_bitop3_b32 v19, v{35+4*i}, s42, v19 bitop3:0xbe")
    a(f"""
    v_cmp_ne_u32 vcc, 0, v19
    s_cbranch_vccz L_f_kpolled
    s_add_u32 s46, s46, 1
    s_cmp_ge_u32 s46, {SPIN_MAX}
    s_cbranch_scc1 L_f_kpolled
    s_mov_b64 exec, vcc
    s_branch L_f_kpoll
    L_f_kpolled:
    s_mov_b64 exec, -1
    """)
    stamp(3)
    for sh in (1, 2, 4, 8):
        a(f"v_max_u32_dpp v20, v20, v20 row_shr:{sh} row_mask:0xf bank_mask:0xf")
    a("v_max_u32_dpp v20, v20, v20 row_bcast:15 row_mask:0xa bank_mask:0xf")
    a("v_max_u32_dpp v20, v20, v20 row_bcast:31 row_mask:0xc bank_mask:0xf")
    a(f"""
    v_readlane_b32 s44, v20, 63
    s_mov_b32 exec_hi, 0xffffff
    s_and_b32 s45, s44, 0x7ff
    s_sub_u32 s45, 2047, s45
    s_mul_i32 s46, s45, 896
    buffer_load_dwordx4 v[32:35], v18, s[4:7], s46 offen
    s_lshr_b32 s47, s45, 2
    s_lshl_b32 s47, s47, 4
    s_bfe_u32 s56, s45, 0x10001
    s_lshl_b32 s56, s56, 13
    s_add_u32 s47, s47, s56
    s_add_u32 s47, s47, {WS_STAT}
    s_mov_b32 s46, 0
    L_f_spoll:
    buffer_load_dwordx4 v[36:39], off, s[36:39], s47 sc1
    s_ashr_i32 s56, s44, 31
    s_not_b32 s56, s56
    s_or_b32 s56, s56, 0x80000000
    s_xor_b32 s56, s56, s44
    s_and_b32 s56, s56, 0xffff0000
    v_mov_b32 v21, 0xbfb8aa3b
    v_mul_f32 v21, s56, v21
    v_exp_f32 v21, v21
    v_mov_b32 v20, s45
    v_add_f32 v21, 1.0, v21
    v_rcp_f32 v21, v21
    s_add_u32 s46, s46, 1
    s_cmp_ge_u32 s46, {SPIN_MAX}
    s_cbranch_scc1 L_f_spolled
    s_waitcnt vmcnt(0)
    v_cmp_ne_u32 vcc, s42, v39
    s_cbranch_vccnz L_f_spoll
    L_f_spolled:
    s_waitcnt vmcnt(0)
    ds_write_b64 v17, v[20:21]
    """)
    stamp(4)
    a(f"""
    s_bitcmp1_b32 s45, 0
    s_cselect_b64 vcc, -1, 0
    v_lshlrev_b32 v40, 16, v38
    v_and_b32 v41, 0xffff0000, v38
    v_cndmask_b32 v36, v36, v37, vcc
    v_cndmask_b32 v37, v40, v41, vcc
    """)
    for d in range(4):
        a(f"v_lshlrev_b32 v{40+2*d}, 16, v{32+d}\nv_and_b32 v{41+2*d}, 0xffff0000, v{32+d}")
    for d in range(4):
        a(f"v_pk_add_f32 v[{40+2*d}:{41+2*d}], v[{40+2*d}:{41+2*d}], v[36:37] op_sel:[0,1] op_sel_hi:[1,1] neg_lo:[0,1] neg_hi:[0,1]")
    for d in range(4):
        a(f"v_pk_mul_f32 v[{40+2*d}:{41+2*d}], v[{40+2*d}:{41+2*d}], v[36:37] op_sel:[0,0] op_sel_hi:[1,0]")
    for d in range(4):
        a(f"v_cvt_pk_bf16_f32 v{32+d}, v{40+2*d}, v{41+2*d}")
    a(f"""
    ds_write_b128 v18, v[32:35] offset:{F_XS}
    s_mov_b64 exec, -1
    s_waitcnt lgkmcnt(0)
    L_f_join:
    s_barrier
    """)
    stamp(5, True)
    a(f"""
    s_cmp_ge_u32 s53, 14
    s_cbranch_scc1 L_f_nogu2
    ds_read_b128 v[20:23], v14 offset:{F_XS}
    s_waitcnt lgkmcnt(0)
    """)
    R = lambda c: 96 + 4*c
    for c in range(8):
        a(f"v_mfma_f32_16x16x32_bf16 v[{R(c)}:{R(c)+3}], v[20:23], v[{GT+4*c}:{GT+4*c+3}], 0")
    for c in range(8):
        a(f"v_add_f32_dpp v{4+(c&1)}, v{R(c)+1}, v{R(c)} row_ror:8 row_mask:{hex(1<<(c>>1))} bank_mask:0xf")
    a(f"""
    s_mov_b32 exec_lo, 0x00ff00ff
    s_mov_b32 exec_hi, 0x00ff00ff
    ds_write2_b32 v15, v4, v5 offset0:0 offset1:2
    s_mov_b64 exec, -1
    s_waitcnt lgkmcnt(0)
    L_f_nogu2:
    s_barrier
    s_cmp_lt_u32 s40, 8
    s_cbranch_scc1 L_f_end
    """)
    stamp(6, True)
    for w in range(7):
        a(f"ds_read_b64 v[{64+2*w}:{65+2*w}], v16 offset:{F_PART+512*w}")
    a("""
    ds_read_b64 v[30:31], v17
    v_mov_b32 v7, s42
    s_waitcnt lgkmcnt(6)
    v_pk_add_f32 v[64:65], v[64:65], v[66:67]
    s_waitcnt lgkmcnt(4)
    v_pk_add_f32 v[68:69], v[68:69], v[70:71]
    s_waitcnt lgkmcnt(2)
    v_pk_add_f32 v[72:73], v[72:73], v[74:75]
    v_pk_add_f32 v[64:65], v[64:65], v[68:69]
    s_waitcnt lgkmcnt(1)
    v_pk_add_f32 v[72:73], v[72:73], v[76:77]
    v_pk_add_f32 v[64:65], v[64:65], v[72:73]
    v_mul_f32 v66, 0xbfb8aa3b, v64
    v_exp_f32 v66, v66
    v_mul_f32 v64, v64, v65
    v_add_f32 v66, 1.0, v66
    v_rcp_f32 v66, v66
    s_waitcnt lgkmcnt(0)
    v_mul_f32 v64, v64, v66
    v_mov_b32 v6, v30
    v_mov_b32_dpp v65, v64 quad_perm:[1,1,3,3] row_mask:0xf bank_mask:0xf
    v_cvt_pk_bf16_f32 v64, v64, v65
    """)
    for q in range(4):
        a(f"v_mov_b32_dpp v{20+q}, v64 row_newbcast:{2*q} row_mask:0xf bank_mask:0xf")
    for c in range(8):
        a(f"v_mfma_f32_16x16x32_bf16 v[{R(c)}:{R(c)+3}], v[20:23], v[{DT+4*c}:{DT+4*c+3}], 0")
    for c in range(8):
        a(f"v_mul_f32_dpp v{4+(c&1)}, v{R(c)}, v31 quad_perm:[0,1,2,3] row_mask:{hex(1<<(c>>1))} bank_mask:0xf")
    a("buffer_store_dwordx4 v[4:7], v10, s[36:39], s52 offen sc1")
    stamp(7)
    a("L_f_end:")
    finish("L_f_probe", 9)
    a("L_exit:\ns_endpgm")
    a.pad(verbose=bool(os.environ.get("PADV")))
    hdr = open(os.path.join(os.path.dirname(__file__), "header.txt")).read()
    src = hdr + f"""; @launch grid=(252,1,1) block=(1024,1,1) lds={LDS_BYTES}
.amdgcn_target "amdgcn-amd-amdhsa--gfx950"
.text
.globl {KN}
.p2align 8
.type {KN},@function
""" + a.text() + f""".section .rodata,"a"
.p2align 6
.amdhsa_kernel {KN}
  .amdhsa_next_free_vgpr 128
  .amdhsa_next_free_sgpr {100 if (stamps or probe) else 64}
  .amdhsa_accum_offset 128
  .amdhsa_group_segment_fixed_size 0
  .amdhsa_kernarg_size 120
  .amdhsa_user_sgpr_count 2
  .amdhsa_user_sgpr_kernarg_segment_ptr 1
  .amdhsa_system_sgpr_workgroup_id_x 1
.end_amdhsa_kernel
"""
    return src

if __name__ == "__main__":
    out = sys.argv[1]
    opts = sys.argv[2:]
    probe = None
    for o in opts:
        if o.startswith("probe="):
            r, k, lo, hi = o[6:].split(",")
            probe = (r, int(k), (int(lo), int(hi)))
    open(out, "w").write(gen(stamps="stamps" in opts, probe=probe, opt=opts))
```

```python
import sys, os
sys.path.insert(0, os.path.dirname(__file__))
from asmlib import Asm
NAME = "parallel_sum__ssm_conv_s4d__moe_arch_mod__prompt"
KN = NAME + "_kernel"

WS_STAT = 0x1000
WS_KEY  = 0x5000
WS_FFN  = 0x8000
WS_XIN  = 0x40000
XINS    = 12416
FFS     = 3712
WS_DBG  = 0x800000
WS_SIZE = 0x1000000
RS   = 8704
RA   = 5984
BB   = 8*RA
XREV = BB + 8*RS
XCH  = 4576
KC   = XREV + 2*XCH + 64
KCS  = 4160
MISC = KC + 4*KCS
LDS_BYTES = MISC + 64
LOG2E = 0x3fb8aa3b
SPIN_MAX = 200000
OOB = 0x7fffffff

class DS:
    def __init__(self, a): self.a = a; self.q = []; self.done = 0
    def issue(self, text, tag=None):
        self.a(text); self.q.append(tag)
    def need(self, tag):
        idx = max((i for i, t in enumerate(self.q) if t == tag), default=-1)
        if idx < self.done: return
        n = len(self.q) - 1 - idx
        n = min(n, 14)
        self.a(f"s_waitcnt lgkmcnt({n})")
        self.done = len(self.q) - n

def gen(stamps=False, probe=None, opt=()):
    a = Asm()
    role = ["c"]
    def stamp(k, wait=False):
        if "lite" in opt and k != 0 and not (role[0] == "c" and k == 14): return
        if stamps or (probe and (k == 0 or (probe[0] == role[0] and probe[1] == k))):
            a(f"{'s_memtime' if 'konly' in opt else 's_memrealtime'} s[{64+2*k}:{65+2*k}]")
            if wait: a("s_waitcnt lgkmcnt(0)")
    def finish(lbl, n):
        if stamps or probe:
            a("s_waitcnt vmcnt(0)"); stamp(n - 1)
        if stamps:
            if role[0] == "k" and "konly" not in opt: a("s_barrier")
            if "konly" not in opt: a("s_barrier")
            a("s_waitcnt lgkmcnt(0)")
            a(f"s_lshl_b32 s62, s2, 4\ns_add_u32 s62, s62, s40\ns_lshl_b32 s62, s62, 6\ns_add_u32 s62, s62, {WS_DBG}")
            a(f"s_mov_b32 s56, s34\ns_mov_b32 s57, s35\ns_mov_b32 s58, {WS_SIZE}\ns_mov_b32 s59, 0x20000")
            a("s_mov_b64 exec, 1\nv_mov_b32 v1, 0")
            for k in list(range(n)) + [15]:
                a(f"v_mov_b32 v2, s{64+2*k}\nbuffer_store_dword v2, v1, s[56:59], s62 offen offset:{4*k}")
        if probe and (role[0] != "k" or probe[0] == "k"):
            if role[0] == "k": a("s_barrier")
            a("s_waitcnt vmcnt(0) lgkmcnt(0)\ns_add_u32 s96, s64, 3000")
            if probe[0] == role[0]:
                lo, hi = probe[2]
                a(f"s_cmp_lt_u32 s40, {lo}\ns_cbranch_scc1 {lbl}\ns_cmp_gt_u32 s40, {hi}\ns_cbranch_scc1 {lbl}")
                a(f"s_sub_u32 s97, s{64+2*probe[1]}, s64\ns_lshl_b32 s97, s97, 2\ns_add_u32 s96, s96, s97")
            a(f"{lbl}:\ns_memrealtime s[98:99]\ns_waitcnt lgkmcnt(0)\ns_sub_u32 s98, s98, s96\ns_cmp_lt_i32 s98, 0\ns_cbranch_scc1 {lbl}")
        a("s_endpgm")
    def srd(base, ptr, size):
        if ptr != base: a(f"s_mov_b64 s[{base}:{base+1}], s[{ptr}:{ptr+1}]")
        a(f"s_mov_b32 s{base+2}, {size}\ns_mov_b32 s{base+3}, 0x20000")
    def cmul(d, x, y, t=None):
        t = d if t is None else t
        a(f"v_pk_mul_f32 v[{t}:{t+1}], v[{x}:{x+1}], v[{y}:{y+1}] op_sel_hi:[0,1]")
        a(f"v_pk_fma_f32 v[{d}:{d+1}], v[{x}:{x+1}], v[{y}:{y+1}], v[{t}:{t+1}] op_sel:[1,1,0] op_sel_hi:[1,0,1] neg_lo:[0,1,0]")
    def next_tag():
        a("s_mul_i32 s42, s42, 0x9e3779b1\ns_add_u32 s42, s42, 0x7f4a7c15")

    def optval(name, default):
        for o in opt:
            if o.startswith(name + "="): return int(o[len(name)+1:])
        return default
    NPRE = optval("npre", 2)
    MERGE = "merge" in opt
    PFE = "pfe" in opt or "pfe0" in opt
    PF = "nopf" not in opt
    PH = {0: [[0, 1], [2, 3, 4], [5, 6, 7]], 1: [[0, 1], [2, 3], [4, 5], [6, 7]], 2: [[0], [1, 2], [3, 4, 5], [6, 7]], 3: [[0], [1, 2], [3, 4], [5, 6], [7]]}[optval("ph", 0)]
    def pf_addr(vdst, t0, t1, widx, w_g, w_d):
        a(f"""
        v_and_b32 v{t0}, 3, v1
        v_lshrrev_b32 v{t1}, 2, v1
        s_lshl_b32 s51, s44, 4
        v_add_u32 v{t1}, s51, v{t1}
        s_lshr_b32 s51, s43, 2
        s_sub_u32 s51, 4, s51
        v_cmp_gt_u32 vcc, s51, v{t0}
        s_min_u32 s51, s43, 4
        s_mul_i32 s52, s43, 3
        s_add_u32 s51, s51, s52
        v_add_u32 v{t0}, s51, v{t0}
        s_movk_i32 s52, 128
        s_cmp_eq_u32 {widx}, {w_d}
        s_cselect_b32 s51, s52, 3584
        s_cselect_b32 s52, 57344, s52
        v_mul_u32_u24 v{t1}, s51, v{t1}
        v_mad_u32_u24 v{vdst}, s52, v{t0}, v{t1}
        v_bfrev_b32 v{t0}, -2
        v_cndmask_b32 v{vdst}, v{t0}, v{vdst}, vcc
        """)
    def pf_srd(b, widx, w_g, w_d):
        a(f"""
        s_cmp_eq_u32 {widx}, {w_d}
        s_cselect_b64 s[{b}:{b+1}], s[26:27], s[24:25]
        s_cmp_eq_u32 {widx}, {w_g}
        s_cselect_b64 s[{b}:{b+1}], s[22:23], s[{b}:{b+1}]
        s_mov_b32 s{b+2}, 1605632
        s_mov_b32 s{b+3}, 0x20000
        """)
    a(f"{KN}:")
    if probe: stamp(0)
    if "map7" in opt:
        a("""
        s_cmp_ge_u32 s2, 256
        s_cbranch_scc1 L_exit
        s_and_b32 s43, s2, 7
        s_lshr_b32 s44, s2, 3
        s_lshl_b32 s45, s43, 5
        s_add_u32 s45, s45, s44
        s_mul_i32 s46, s45, 2341
        s_lshr_b32 s46, s46, 16
        s_mul_i32 s47, s46, 28
        s_sub_u32 s47, s45, s47
        s_lshl_b32 s47, s47, 3
        s_add_u32 s47, s47, s46
        s_cmp_eq_u32 s43, 7
        s_cselect_b32 s2, s45, s47
        """)
    a(f"""
    v_lshrrev_b32 v2, 6, v0
    v_and_b32 v1, 63, v0
    s_and_b32 s43, s2, 7
    v_readfirstlane_b32 s40, v2
    s_lshr_b32 s44, s2, 3
    """)
    if stamps:
        a("s_cmp_lg_u32 s40, 0\ns_cbranch_scc1 L_nos0"); stamp(0); a("L_nos0:")
    a(f"""
    s_mul_i32 s41, s43, 28
    s_add_u32 s41, s41, s44
    s_lshl_b32 s48, s41, 2
    s_cmp_ge_u32 s44, 28
    s_cselect_b32 s45, 0, s40
    s_cmp_lt_u32 s45, 8
    s_cbranch_scc1 L_xf
    """)
    role[0] = "k"
    a(f"""
    s_load_dwordx8 s[4:11], s[0:1], 8
    s_load_dwordx2 s[14:15], s[0:1], 40
    s_setprio 3
    s_lshl_b32 s47, s41, 10
    s_sub_u32 s47, s47, 1024
    v_lshl_add_u32 v6, v0, 1, s47
    v_mov_b32 v16, 0
    v_mov_b32 v17, 0
    v_mov_b32 v18, 0
    v_mov_b32 v19, 0
    s_mov_b32 s38, 229376
    s_mov_b32 s39, 0x20000
    s_mov_b64 s[58:59], s[38:39]
    s_waitcnt lgkmcnt(0)
    """)
    stamp(1)
    a("s_load_dword s54, s[14:15], s48")
    a("s_mov_b64 s[36:37], s[6:7]\ns_mov_b64 s[6:7], s[38:39]\nbuffer_load_short_d16_hi v16, v6, s[4:7], 0 offen")
    a("buffer_load_short_d16_hi v17, v6, s[36:39], 0 offen")
    a("s_mov_b64 s[56:57], s[10:11]\ns_mov_b64 s[10:11], s[38:39]\nbuffer_load_short_d16_hi v18, v6, s[8:11], 0 offen")
    a("buffer_load_short_d16_hi v19, v6, s[56:59], 0 offen")
    a("s_branch L_kw")
    role[0] = "c"
    a(f"""
    L_xf:
    s_load_dwordx2 s[4:5], s[0:1], 0
    s_load_dwordx8 s[20:27], s[0:1], 64
    s_load_dwordx2 s[34:35], s[0:1], 112
    s_mov_b32 s6, 1835008
    s_mov_b32 s7, 0x20000
    s_cmp_ge_u32 s44, 28
    s_cbranch_scc1 L_ffn
    """)
    if "cpf" in opt:
        a("""
        s_cmp_gt_u32 s40, 1
        s_cbranch_scc1 L_x_nocpf
        s_getpc_b64 s[12:13]
        L_cpf_base:
        v_lshlrev_b32 v3, 7, v0
        v_min_u32 v3, L_exit-L_cpf_base, v3
        v_mov_b32 v5, s13
        v_add_co_u32 v4, vcc, s12, v3
        v_addc_co_u32 v5, vcc, 0, v5, vcc
        global_load_dword v26, v[4:5], off
        L_x_nocpf:
        """)
    if "konly" in opt: a("s_endpgm")
    a(f"""
    s_setprio 2
    v_lshrrev_b32 v5, 5, v1
    v_and_b32 v3, 31, v1
    s_mul_i32 s45, s40, 28
    s_add_u32 s45, s45, s44
    s_lshl_b32 s46, s43, 7
    s_add_u32 s47, s45, s46
    s_mul_i32 s46, s47, 1792
    v_cmp_gt_u32 vcc, 28, v3
    v_lshlrev_b32 v3, 4, v3
    v_bfrev_b32 v9, -4
    v_mul_u32_u24 v4, 896, v5
    v_cndmask_b32 v3, v9, v3, vcc
    v_add_u32 v4, v4, v3
    s_movk_i32 s10, 896
    s_mov_b32 s11, s7
    v_and_b32 v7, 3, v1
    v_bfe_u32 v8, v1, 4, 1
    v_lshl_add_u32 v7, v8, 2, v7
    v_bfe_u32 v8, v1, 2, 2
    v_bfe_u32 v9, v0, 5, 3
    v_lshl_add_u32 v8, v9, 2, v8
    v_mul_u32_u24 v9, 3584, v7
    v_lshl_add_u32 v9, v8, 2, v9
    s_mul_i32 s49, s44, 37
    s_lshr_b32 s49, s49, 8
    s_mul_i32 s50, s49, 7
    s_sub_u32 s50, s44, s50
    s_lshl_b32 s51, s43, 2
    s_add_u32 s49, s49, s51
    s_mul_i32 s60, s49, 57344
    s_lshl_b32 s61, s50, 7
    s_add_u32 s60, s60, s61
    s_add_u32 s61, s60, 28672
    s_cmp_ge_u32 s45, 128
    s_waitcnt lgkmcnt(0)
    """)
    stamp(1)
    a("""
    s_load_dword s42, s[34:35], 0
    s_cbranch_scc1 L_x_nost0
    buffer_load_dwordx4 v[32:35], v4, s[4:7], s46 offen
    buffer_load_dwordx4 v[36:39], v4, s[4:7], s46 offen offset:448
    s_mov_b64 s[8:9], s[20:21]
    buffer_load_dwordx4 v[40:43], v3, s[8:11], 0 offen
    buffer_load_dwordx4 v[44:47], v3, s[8:11], 0 offen offset:448
    s_cmp_lt_u32 s40, 4
    s_cbranch_scc1 L_x_notile0
    L_x_nost0:
    """)
    for k, r in enumerate([64, 65, 66, 72]):
        a(f"buffer_load_dword v{r}, v9, s[4:7], s60 offen offset:{k*896}")
    for k, r in enumerate([68, 69, 70, 73]):
        a(f"buffer_load_dword v{r}, v9, s[4:7], s61 offen offset:{k*896}")
    a("L_x_notile0:")
    a(f"""
    v_mul_u32_u24 v10, {XINS}, v8
    v_lshl_add_u32 v10, v7, 4, v10
    s_mul_i32 s53, s50, {32*XINS}
    s_mul_i32 s51, s49, 384
    s_add_u32 s53, s53, s51
    s_add_u32 s53, s53, {WS_XIN}
    s_and_b32 s49, s47, 1
    s_lshl_b32 s49, s49, 13
    s_lshr_b32 s50, s47, 1
    s_lshl_b32 s50, s50, 4
    s_add_u32 s58, s49, s50
    s_add_u32 s58, s58, {WS_STAT}
    s_lshl_b32 s59, s47, 3
    s_add_u32 s59, s59, {WS_KEY}
    s_lshl_b32 s49, s47, 1
    s_sub_u32 s49, 2047, s49
    v_sub_u32 v58, s49, v5
    v_mov_b32 v48, 0
    v_mov_b32 v49, 0
    v_mov_b32 v50, 0
    v_mov_b32 v51, 0
    s_mov_b32 s38, {WS_SIZE}
    s_mov_b32 s39, s7
    s_mov_b64 s[30:31], s[6:7]
    """)
    PF4 = "pf4" in opt or "pf4a" in opt
    if PF4:
        a(f"""
        v_bfrev_b32 v25, -2
        v_bfrev_b32 v27, -2
        s_cmp_lg_u32 s40, 4
        s_cbranch_scc1 L_x_nopfa
        v_and_b32 v8, 3, v1
        v_lshrrev_b32 v9, 2, v1
        s_lshl_b32 s51, s44, 4
        v_add_u32 v9, s51, v9
        s_lshr_b32 s51, s43, 2
        s_sub_u32 s51, 4, s51
        v_cmp_gt_u32 vcc, s51, v8
        s_min_u32 s51, s43, 4
        s_mul_i32 s52, s43, 3
        s_add_u32 s51, s51, s52
        v_add_u32 v8, s51, v8
        v_mul_u32_u24 v59, 3584, v9
        v_lshl_add_u32 v59, v8, 7, v59
        v_mul_u32_u24 v8, 57344, v8
        v_lshl_add_u32 v8, v9, 7, v8
        v_cndmask_b32 v25, v25, v59, vcc
        v_cndmask_b32 v27, v27, v8, vcc
        L_x_nopfa:
        """)
    elif PF and not PFE:
        a("v_bfrev_b32 v25, -2\ns_cmp_lt_u32 s40, 5\ns_cbranch_scc1 L_x_nopfa")
        pf_addr(25, 8, 9, "s40", 5, 7)
        a("L_x_nopfa:")
    a(f"""
    s_load_dwordx2 s[16:17], s[0:1], 48
    s_load_dwordx2 s[28:29], s[0:1], 96
    s_mov_b64 s[36:37], s[34:35]
    v_lshrrev_b32 v11, 4, v0
    v_mul_u32_u24 v11, 384, v11
    v_and_b32 v12, 7, v0
    v_lshl_add_u32 v12, v12, 4, v11
    v_and_b32 v13, 15, v0
    v_lshl_add_u32 v11, v13, 4, v11
    v_cmp_lt_u32 s[56:57], 7, v13
    v_lshrrev_b32 v8, 2, v13
    v_lshrrev_b32 v9, 4, v1
    v_cmp_eq_u32 vcc, v8, v9
    v_lshlrev_b32 v8, 4, v1
    v_mov_b32 v9, 0x3f80
    v_lshlrev_b32 v8, v8, v9
    v_cndmask_b32 v8, 0, v8, vcc
    v_and_b32 v9, 2, v1
    v_cmp_eq_u32 vcc, 0, v9
    v_lshlrev_b32 v13, 4, v0
    v_lshlrev_b32 v7, 3, v0
    v_cndmask_b32 v28, 0, v8, vcc
    v_sub_u32 v29, v8, v28
    v_mov_b32 v30, v28
    v_mov_b32 v31, v29
    v_sub_u32 v7, {XREV+4088}, v7
    v_mul_u32_u24 v6, 3584, v0
    v_and_b32 v8, 3, v1
    v_lshrrev_b32 v24, 2, v1
    v_lshl_add_u32 v24, v8, 4, v24
    v_lshl_add_u32 v24, v9, 2, v24
    s_mul_i32 s51, s40, {8*576}
    v_lshl_add_u32 v24, v24, 3, s51
    s_cmp_gt_u32 s40, 2
    s_cbranch_scc1 L_x_nopad
    s_mul_i32 s51, s40, {XCH}
    s_add_u32 s51, s51, {XREV+4096}
    v_lshl_add_u32 v8, v1, 4, s51
    s_mov_b32 exec_hi, 0
    s_mov_b32 exec_lo, 0x3fffffff
    s_cmp_lt_u32 s40, 2
    s_cbranch_scc1 L_x_pad
    v_lshrrev_b32 v8, 1, v1
    v_mul_u32_u24 v8, {KCS-32}, v8
    v_lshl_add_u32 v8, v1, 4, v8
    v_add_u32 v8, {KC}, v8
    s_mov_b32 exec_lo, 0xff
    L_x_pad:
    ds_write_b128 v8, v[48:51]
    s_mov_b64 exec, -1
    L_x_nopad:
    s_mov_b32 s50, 0xffff0000
    s_mov_b32 s49, 0x3f803f80
    s_waitcnt lgkmcnt(0)
    """)
    next_tag()
    stamp(2)
    a(f"""
    v_mov_b32 v55, s42
    v_mov_b32 v57, s42
    s_cmp_lt_u32 s40, 4
    s_cbranch_scc1 L_x_w4
    s_lshl_b32 s51, s40, 2
    s_add_u32 s51, s51, {MISC}
    v_mov_b32 v8, s51
    ds_write_b32 v8, v55
    s_cmp_ge_u32 s45, 128
    s_cbranch_scc1 L_x_nost1
    s_waitcnt vmcnt(8)
    s_branch L_x_w4j
    L_x_w4:
    s_cmp_lg_u32 s40, 0
    s_cbranch_scc1 L_x_hsd
    v_and_b32 v8, 3, v1
    v_lshlrev_b32 v8, 2, v8
    v_add_u32 v8, {MISC+16}, v8
    s_mov_b32 s51, 0
    L_x_hs:
    ds_read_b32 v9, v8
    s_add_u32 s51, s51, 1
    s_cmp_ge_u32 s51, {SPIN_MAX}
    s_cbranch_scc1 L_x_hsd
    s_waitcnt lgkmcnt(0)
    v_cmp_ne_u32 vcc, s42, v9
    s_cbranch_vccnz L_x_hs
    L_x_hsd:
    s_waitcnt vmcnt(0)
    L_x_w4j:
    """)
    stamp(3)
    for i in range(8):
        a(f"""
        v_dot2c_f32_bf16 v48, s49, v{32+i}
        v_dot2c_f32_bf16 v49, v{32+i}, v{32+i}
        v_dot2c_f32_bf16 v50, v{32+i}, v{40+i}
        v_dot2c_f32_bf16 v51, s49, v{40+i}
        """)
    for sh in (1, 2, 4, 8):
        for r in (48, 49, 50, 51):
            a(f"v_add_f32_dpp v{r}, v{r}, v{r} row_shr:{sh} row_mask:0xf bank_mask:0xf bound_ctrl:0")
    for r in (48, 49, 50, 51):
        a(f"v_add_f32_dpp v{r}, v{r}, v{r} row_bcast:15 row_mask:0xa bank_mask:0xf")
    a(f"""
    v_mul_f32 v48, 0x3b124925, v48
    v_mul_f32 v49, 0x3b124925, v49
    v_fma_f32 v49, -v48, v48, v49
    v_max_f32 v49, 0, v49
    v_cvt_pk_bf16_f32 v52, v49, v48
    v_lshlrev_b32 v49, 16, v52
    v_add_f32 v49, 0x3727c5ac, v49
    v_cvt_pk_bf16_f32 v49, v49, v49
    v_lshlrev_b32 v49, 16, v49
    v_sqrt_f32 v49, v49
    v_and_b32 v54, 0xffff0000, v52
    v_cvt_pk_bf16_f32 v49, v49, v49
    v_lshlrev_b32 v49, 16, v49
    v_rcp_f32 v53, v49
    v_fma_f32 v50, -v54, v51, v50
    v_mov_b32_dpp v48, v54 row_bcast:31 row_mask:0xc bank_mask:0xf
    v_mul_f32 v50, v50, v53
    v_mov_b32_dpp v52, v53 row_bcast:31 row_mask:0xc bank_mask:0xf
    v_lshrrev_b32 v48, 16, v48
    v_cvt_pk_bf16_f32 v50, v50, v50
    v_or_b32 v54, v54, v48
    s_mov_b32 exec_lo, 0
    s_brev_b32 exec_hi, 1
    buffer_store_dwordx4 v[52:55], off, s[36:39], s58 sc1
    s_mov_b64 exec, -1
    v_ashrrev_i32 v51, 31, v50
    v_or_b32 v51, 0x80000000, v51
    v_xor_b32 v50, v50, v51
    v_and_or_b32 v56, v50, s50, v58
    v_max_u32_dpp v56, v56, v56 row_bcast:31 row_mask:0xc bank_mask:0xf
    s_mov_b32 exec_lo, 0
    s_brev_b32 exec_hi, 1
    buffer_store_dwordx2 v[56:57], off, s[36:39], s59 sc1
    s_mov_b64 exec, -1
    s_cmp_lt_u32 s40, 4
    s_cbranch_scc1 L_x_notile1
    s_waitcnt vmcnt(2)
    s_branch L_x_st1j
    L_x_nost1:
    s_waitcnt vmcnt(0)
    L_x_st1j:
    v_mov_b32 v67, s42
    v_mov_b32 v71, s42
    v_mov_b32 v75, s42
    buffer_store_dwordx4 v[64:67], v10, s[36:39], s53 offen sc1
    buffer_store_dwordx4 v[68:71], v10, s[36:39], s53 offen offset:128 sc1
    buffer_store_dwordx4 v[72:75], v10, s[36:39], s53 offen offset:256 sc1
    """)
    if PF4:
        a("s_cmp_lg_u32 s40, 4\ns_cbranch_scc1 L_x_notile1")
        srd(12, 22, 1605632); srd(8, 26, 1605632); srd(24, 24, 1605632)
        if "pf4a" in opt: a("s_waitcnt vmcnt(0)")
        a("buffer_load_dword v60, v25, s[12:15], 0 offen\nbuffer_load_dword v61, v25, s[24:27], 0 offen\nbuffer_load_dword v62, v27, s[8:11], 0 offen")
    elif PF and not PFE:
        a("s_cmp_eq_u32 s40, 4\ns_cbranch_scc1 L_x_notile1")
        pf_srd(12, "s40", 5, 7)
        a("buffer_load_dword v26, v25, s[12:15], 0 offen")
    a("L_x_notile1:")
    stamp(4)
    a(f"""
    s_load_dword s55, s[16:17], s48
    s_waitcnt lgkmcnt(0)
    s_lshl_b32 s49, s55, 16
    s_and_b32 s50, s55, 0xffff0000
    v_mov_b32 v14, 1.0
    v_add_f32 v15, s50, v14
    v_add_f32 v14, s49, v14
    s_mul_i32 s51, s41, {XINS}
    s_add_u32 s51, s51, {WS_XIN}
    s_mov_b32 s52, {WS_STAT}
    s_mov_b32 s53, {WS_STAT+8192}
    s_mov_b32 s49, 0
    """)
    def poll_loads():
        a("""
        buffer_load_dwordx4 v[112:115], v11, s[36:39], s51 offen sc1
        buffer_load_dwordx4 v[116:119], v12, s[36:39], s51 offen offset:256 sc1
        buffer_load_dwordx4 v[120:123], v13, s[36:39], s52 offen sc1
        buffer_load_dwordx4 v[124:127], v13, s[36:39], s53 offen sc1
        """)
    if optval("polld", 0):
        a(f"s_add_u32 s96, s66, {optval('polld', 0)}\nL_x_pd:\ns_memrealtime s[98:99]\ns_waitcnt lgkmcnt(0)\ns_sub_u32 s98, s98, s96\ns_cmp_lt_i32 s98, 0\ns_cbranch_scc1 L_x_pd")
        stamp(11); poll_loads(); a("s_waitcnt vmcnt(0)"); stamp(12); a("s_barrier"); stamp(5)
    elif "pollmid" in opt:
        a("s_barrier"); stamp(11); poll_loads(); a("s_barrier"); stamp(5)
    elif "pollb1" in opt:
        if "ackst" in opt:
            a("s_waitcnt vmcnt(1)"); stamp(11); a("s_waitcnt vmcnt(0)"); stamp(12)
        a("s_barrier"); stamp(5); poll_loads()
    else:
        a("s_waitcnt vmcnt(0)"); stamp(11); poll_loads(); a("s_barrier"); stamp(5)
    if not MERGE:
        a("s_barrier")
        stamp(6)
    a(f"""
    L_x_poll:
    s_waitcnt vmcnt(0)
    v_xor_b32 v8, s42, v115
    v_bitop3_b32 v8, v119, s42, v8 bitop3:0xbe
    v_bitop3_b32 v8, v123, s42, v8 bitop3:0xbe
    v_bitop3_b32 v8, v127, s42, v8 bitop3:0xbe
    v_cmp_ne_u32 vcc, 0, v8
    s_cbranch_vccz L_x_polled
    s_add_u32 s49, s49, 1
    s_cmp_ge_u32 s49, {SPIN_MAX}
    s_cbranch_scc1 L_x_polled
    s_mov_b64 exec, vcc
    """)
    poll_loads()
    a("""
    s_branch L_x_poll
    L_x_polled:
    s_mov_b64 exec, -1
    """)
    if stamps: a("s_mov_b32 s94, s49")
    stamp(7)
    a("v_cndmask_b32 v115, v116, v117, s[56:57]")
    a("""
    v_lshlrev_b32 v8, 16, v122
    v_and_b32 v9, 0xffff0000, v122
    v_lshlrev_b32 v10, 16, v126
    v_and_b32 v11, 0xffff0000, v126
    """)
    for r in range(4):
        a(f"v_lshlrev_b32 v{64+2*r}, 16, v{112+r}\nv_and_b32 v{65+2*r}, 0xffff0000, v{112+r}")
    for r in range(4):
        e = r & 1; mm = 8 + 2*(r >> 1)
        a(f"v_pk_add_f32 v[{32+2*r}:{33+2*r}], v[{64+2*r}:{65+2*r}], v[{mm}:{mm+1}] op_sel:[0,{e}] op_sel_hi:[1,{e}] neg_lo:[0,1] neg_hi:[0,1]")
    for r in range(4):
        e = r & 1; rs = 120 + 4*(r >> 1)
        a(f"v_pk_mul_f32 v[{32+2*r}:{33+2*r}], v[{32+2*r}:{33+2*r}], v[{rs}:{rs+1}] op_sel:[0,{e}] op_sel_hi:[1,{e}]")
    a(f"""
    v_cvt_pk_bf16_f32 v40, v38, v36
    v_cvt_pk_bf16_f32 v41, v34, v32
    ds_write_b64 v7, v[40:41]
    v_cvt_pk_bf16_f32 v42, v39, v37
    v_cvt_pk_bf16_f32 v43, v35, v33
    ds_write_b64 v7, v[42:43] offset:{XCH}
    s_waitcnt lgkmcnt(0)
    s_barrier
    """)
    stamp(8)
    for r in range(4):
        for ch in range(2):
            a(f"v_fma_f32 v{16+4*ch+r}, v{32+2*r+ch}, v{14+ch}, v{64+2*r+ch}")
    a(f"""
    v_mul_u32_u24 v8, {FFS}, v1
    s_lshl_b32 s51, s41, 4
    s_add_u32 s51, s51, {WS_FFN}
    v_mov_b32 v52, 0
    v_mov_b32 v53, 0
    s_barrier
    """)
    for p in range(1, len(PH)):
        a(f"s_cmp_lt_u32 s40, {PH[p][0]}\ns_cbranch_scc1 L_x_epi\ns_barrier")
    a("L_x_epi:")
    stamp(9, True)
    order = [0, 1, 4, 5, 2, 3, 6, 7]
    for i, kw in enumerate(order):
        a(f"ds_read_b64 v[{32+2*i}:{33+2*i}], v24 offset:{kw*576}")
    for i in range(4):
        a(f"s_waitcnt lgkmcnt({6-2*i})")
        c = 16 + 4*(i & 1)
        a(f"v_mfma_f32_16x16x32_bf16 v[{c}:{c+3}], v[28:31], v[{32+4*i}:{35+4*i}], v[{c}:{c+3}]")
    for r in range(4):
        a(f"v_cvt_pk_bf16_f32 v{48+r}, v{16+r}, v{20+r}")
        a(f"buffer_store_dword v{48+r}, v6, s[28:31], s48 offen offset:{896*r}")
    stamp(10)
    for p in range(len(PH) - 1, 0, -1):
        a(f"s_cmp_ge_u32 s40, {PH[p][0]}\ns_cbranch_scc1 L_x_nofp\ns_barrier")
    a(f"""
    s_cmp_lg_u32 s40, 0
    s_cbranch_scc1 L_x_nofp
    s_mov_b32 s49, 0
    s_mov_b32 exec_hi, 0xffffff
    L_x_fpoll:
    buffer_load_dwordx4 v[52:55], v8, s[36:39], s51 offen sc1
    s_waitcnt vmcnt(0)
    v_cmp_ne_u32 vcc, s42, v55
    s_cbranch_vccz L_x_fpolled
    s_add_u32 s49, s49, 1
    s_cmp_ge_u32 s49, {SPIN_MAX}
    s_cbranch_scc1 L_x_fpolled
    s_mov_b64 exec, vcc
    s_branch L_x_fpoll
    L_x_fpolled:
    s_mov_b64 exec, -1
    v_readfirstlane_b32 s52, v54
    """)
    stamp(13)
    for sh in (1, 2, 4, 8):
        for r in (52, 53):
            a(f"v_add_f32_dpp v{r}, v{r}, v{r} row_shr:{sh} row_mask:0xf bank_mask:0xf bound_ctrl:0")
    for r in (52, 53): a(f"v_add_f32_dpp v{r}, v{r}, v{r} row_bcast:15 row_mask:0xa bank_mask:0xf")
    for r in (52, 53): a(f"v_add_f32_dpp v{r}, v{r}, v{r} row_bcast:31 row_mask:0xc bank_mask:0xf")
    a(f"""
    v_mov_b32 v54, s52
    v_mov_b32 v8, {MISC}
    s_mov_b32 exec_lo, 0
    s_brev_b32 exec_hi, 1
    ds_write_b128 v8, v[52:55]
    s_cmp_lg_u32 s41, 0
    s_cbranch_scc1 L_x_noep
    v_mov_b32 v9, s42
    buffer_store_dword v9, off, s[36:39], 0
    L_x_noep:
    s_mov_b64 exec, -1
    s_waitcnt lgkmcnt(0)
    L_x_nofp:
    s_barrier
    v_mov_b32 v8, {MISC}
    ds_read_b128 v[52:55], v8
    s_waitcnt lgkmcnt(0)
    v_readfirstlane_b32 s52, v54
    v_lshrrev_b32 v9, 2, v54
    v_cmp_eq_u32 vcc, v9, v0
    s_and_saveexec_b64 s[60:61], vcc
    s_cbranch_execz L_x_end
    s_bitcmp1_b32 s52, 0
    s_cselect_b64 vcc, -1, 0
    v_cndmask_b32 v16, v16, v17, vcc
    v_cndmask_b32 v18, v18, v19, vcc
    v_cndmask_b32 v20, v20, v21, vcc
    v_cndmask_b32 v22, v22, v23, vcc
    s_bitcmp1_b32 s52, 1
    s_cselect_b64 vcc, -1, 0
    v_cndmask_b32 v16, v16, v18, vcc
    v_cndmask_b32 v17, v20, v22, vcc
    v_pk_add_f32 v[16:17], v[16:17], v[52:53]
    v_mul_u32_u24 v9, 896, v54
    v_cvt_pk_bf16_f32 v16, v16, v17
    buffer_store_dword v16, v9, s[28:31], s48 offen
    L_x_end:
    """)
    finish("L_x_probe", 15)
    role[0] = "k"
    a("L_kw:")
    if PFE: a("s_load_dwordx8 s[20:27], s[0:1], 64")
    if stamps: a("s_load_dwordx2 s[34:35], s[0:1], 112")
    a(f"""
    s_setprio 1
    s_sub_u32 s45, s40, 8
    s_lshr_b32 s46, s45, 2
    v_lshrrev_b32 v5, 5, v1
    v_and_b32 v3, 31, v1
    s_mul_i32 s49, s45, {RA}
    s_mov_b32 m0, s49
    v_mul_u32_u24 v30, 272, v3
    v_lshl_add_u32 v30, v5, 4, v30
    v_add_u32 v28, s49, v30
    s_mul_i32 s53, s45, {RS}
    v_add_u32 v30, s53, v30
    s_lshl_b32 s49, s45, 5
    v_add_u32 v7, s49, v3
    v_mul_u32_u24 v20, {4*RS}, v5
    v_lshl_add_u32 v20, v7, 2, v20
    v_add_u32 v20, {BB}, v20
    v_mul_u32_u24 v29, {2*KCS}, v5
    v_lshl_add_u32 v29, v7, 4, v29
    v_add_u32 v29, {KC+32}, v29
    v_and_b32 v8, 15, v1
    v_lshrrev_b32 v9, 4, v1
    s_and_b32 s50, s45, 3
    s_lshl_b32 s52, s50, 7
    s_mul_i32 s51, s46, {2*KCS}
    s_add_u32 s51, s51, s52
    s_add_u32 s51, s51, {KC+KCS+4}
    v_and_b32 v10, 1, v8
    v_mul_u32_u24 v10, {KCS}, v10
    v_sub_u32 v10, s51, v10
    v_lshrrev_b32 v11, 1, v8
    v_lshl_add_u32 v10, v11, 2, v10
    v_lshl_add_u32 v0, v9, 4, v10
    s_mul_i32 s51, s46, {XCH}
    s_add_u32 s51, s51, s52
    s_add_u32 s51, s51, {XREV+480}
    v_lshlrev_b32 v10, 5, v8
    v_sub_u32 v10, s51, v10
    v_lshl_add_u32 v2, v9, 4, v10
    s_mul_i32 s51, s45, 576
    v_lshl_add_u32 v10, v5, 6, s51
    v_lshl_add_u32 v31, v1, 3, v10
    """)
    if PF and PFE: pf_addr(25, 8, 9, "s45", 0, 2)
    a(f"""
    s_lshl_b32 s49, s46, 4
    s_sub_u32 s49, 16, s49
    v_mov_b32 v4, {LOG2E}
    s_waitcnt lgkmcnt(0)
    s_lshl_b32 s54, s54, s49
    s_and_b32 s54, s54, 0xffff0000
    v_mul_f32 v4, s54, v4
    v_exp_f32 v4, v4
    """)
    stamp(2)
    if PF and PFE:
        pf_srd(28, "s45", 0, 2)
        a("s_cmp_gt_u32 s45, 2\ns_cbranch_scc1 L_k_w0")
        if "pfe0" in opt: a("buffer_load_dword v26, v25, s[28:31], 0 offen\ns_waitcnt vmcnt(1)\ns_branch L_k_w1")
        else: a("s_waitcnt vmcnt(0)\nbuffer_load_dword v26, v25, s[28:31], 0 offen\ns_branch L_k_w1")
        a("L_k_w0:\ns_waitcnt vmcnt(0)\nL_k_w1:")
    else: a("s_waitcnt vmcnt(0)")
    stamp(3, True)
    a(f"""
    v_mul_f32 v16, {LOG2E}, v16
    v_exp_f32 v16, v16
    v_mov_b32 v8, 0x3f80
    v_cvt_pk_bf16_f32 v4, v4, v16
    ds_write_addtid_b32 v8 offset:0
    v_and_b32 v16, 0xffff0000, v4
    v_lshlrev_b32 v4, 16, v4
    v_mul_f32 v16, v16, v4
    v_mul_f32 v17, v17, v4
    v_add_f32 v4, v4, v4
    v_mul_f32 v16, 0xbfb8aa3b, v16
    v_mul_f32 v17, 0.15915494, v17
    v_mul_f32 v18, v18, v4
    v_mul_f32 v19, -v19, v4
    """)
    Z1, W8, ZZ = 32, 14, 36
    a(f"""
    v_fract_f32 v7, v17
    v_mul_f32 v9, 0x43800000, v17
    v_exp_f32 v6, v16
    v_mul_f32 v8, 0x43800000, v16
    v_fract_f32 v9, v9
    v_cos_f32 v{Z1}, v7
    v_sin_f32 v{Z1+1}, v7
    v_exp_f32 v8, v8
    v_cos_f32 v{ZZ}, v9
    v_sin_f32 v{ZZ+1}, v9
    """)
    if "w8direct" in opt:
        a(f"""
        v_mul_f32 v11, 0xc1000000, v17
        v_mul_f32 v10, 0x41000000, v16
        v_fract_f32 v11, v11
        v_exp_f32 v10, v10
        v_cos_f32 v{W8}, v11
        v_sin_f32 v{W8+1}, v11
        """)
    a(f"""
    v_pk_mul_f32 v[{Z1}:{Z1+1}], v[{Z1}:{Z1+1}], v[6:7] op_sel_hi:[1,0]
    v_pk_mul_f32 v[{ZZ}:{ZZ+1}], v[{ZZ}:{ZZ+1}], v[8:9] op_sel_hi:[1,0]
    """)
    if "w8direct" in opt: a(f"v_pk_mul_f32 v[{W8}:{W8+1}], v[{W8}:{W8+1}], v[10:11] op_sel_hi:[1,0]")
    a("s_setprio 0\n.p2align 3")
    slot_of = {0:0, 256:1, 512:2, 768:3, 1024:4, 1280:5, 1536:6, 1792:7, 2048:8, 1:9, 4:10, 260:11, 516:12, 772:13,
               2:14, 258:15, 6:16, 262:17, 3:18, 5:19, 7:20}
    tcount = [0]
    def rowoff(h):
        s = slot_of[h]; m, e = s >> 1, s & 1
        return (8*(m >> 2) + 4*e + (m & 3)) * 272
    z = {1: Z1, 256: ZZ}
    seq = [(2,1,1,1), (512,256,256,1), (3,2,1,1), (768,512,256,1), (4,2,2,1), (1024,512,512,1), (6,4,2,1), (5,4,1,0), (7,4,3,0),
           (258,256,2,0), (260,256,4,0), (262,256,6,0), (516,512,4,0), (772,768,4,0), (1280,1024,256,0), (1536,1024,512,0), (1792,1024,768,0), (2048,1024,1024,0)]
    pend = [1, 256]
    nxt = 38
    for n, (h, p, q, keep) in enumerate(seq):
        hp = pend.pop(0); t = 8 + (n & 3)
        a(f"v_cvt_pk_bf16_f32 v{t}, v{z[hp]}, v{z[hp]+1}")
        if keep: d = nxt; nxt += 2
        else: d = 56 + 2*(n & 3)
        cmul(d, z[p], z[q]); z[h] = d; pend.append(h)
        a(f"ds_write_addtid_b32 v{t} offset:{rowoff(hp)}")
    hp = pend.pop(0)
    a(f"v_cvt_pk_bf16_f32 v10, v{z[hp]}, v{z[hp]+1}")
    if "w8direct" not in opt:
        x = z[4]
        a(f"v_pk_mul_f32 v[{W8}:{W8+1}], v[{x}:{x+1}], v[{x}:{x+1}] op_sel_hi:[0,1] neg_hi:[0,1]")
        a(f"v_pk_fma_f32 v[{W8}:{W8+1}], v[{x}:{x+1}], v[{x}:{x+1}], v[{W8}:{W8+1}] op_sel:[1,1,0] op_sel_hi:[1,0,1] neg_lo:[0,1,0] neg_hi:[0,1,0]")
    a(f"ds_write_addtid_b32 v10 offset:{rowoff(hp)}")
    hp = pend.pop(0)
    a(f"v_cvt_pk_bf16_f32 v11, v{z[hp]}, v{z[hp]+1}")
    a(f"ds_write_addtid_b32 v11 offset:{rowoff(hp)}")
    if "konly" in opt: stamp(7)
    a("s_mov_b32 m0, s53\ns_mov_b32 s49, 2\n.p2align 3\nL_k_bchain:")
    for j in range(16):
        t = 8 + (j & 3)
        a(f"v_cvt_pk_bf16_f32 v{t}, v18, v19")
        cmul(18, 18, W8, 12)
        a(f"ds_write_addtid_b32 v{t} offset:{BB+j*272}")
    a(f"""
    s_add_u32 m0, m0, {16*272}
    s_sub_u32 s49, s49, 1
    s_cmp_lg_u32 s49, 0
    s_cbranch_scc1 L_k_bchain
    s_mov_b32 m0, s53
    """)
    if "pollmid" in opt: a("s_barrier")
    stamp(4, True)
    ds = DS(a)
    def kread(ks):
        ds.issue(f"ds_read_b128 v[{64+4*ks}:{67+4*ks}], v28 offset:{32*ks}", ks)
        ds.issue(f"ds_read_b128 v[{32+4*ks}:{35+4*ks}], v30 offset:{BB+32*ks}", ks)
    for ks in range(4): kread(ks)
    a("v_add_u32 v21, 4, v20\nv_add_u32 v22, 128, v20\nv_cmp_eq_u32 vcc, 0, v3\nv_add_u32 v23, 2556, v20\nv_and_b32 v24, 1, v3\nv_cndmask_b32 v23, v20, v23, vcc\nv_cmp_eq_u32 s[56:57], 1, v24")
    for ks in range(8):
        ds.need(ks)
        c = "0" if ks == 0 else "v[96:111]"
        a(f"v_mfma_f32_32x32x16_bf16 v[96:111], v[{64+4*ks}:{67+4*ks}], v[{32+4*ks}:{35+4*ks}], {c}")
        if ks < 4: kread(ks + 4)
    a("v_add_u32 v3, 1024, v0\nv_add_u32 v4, 2048, v0\nv_add_u32 v5, 3072, v0\nv_mov_b32 v6, v31")
    for m in range(11):
        a(f"ds_write_addtid_b32 v{96+m} offset:{BB+m*256}")
    a("s_cmp_gt_u32 s45, 1\ns_waitcnt lgkmcnt(0)\ns_barrier")
    stamp(5, True)
    SL = {0:(20,0), 8:(21,0), 1:(22,4), 4:(20,5), 2:(20,7), 6:(20,8), 3:(20,9), 5:(22,9), 7:(20,10), "p":(23,0)}
    def expand(vals, kk, prev, mid=None):
        ds = DS(a); reg = {}
        for i, v in enumerate(vals):
            ad, o = SL[v]; r = 32 + 4*i; reg[v] = r
            ds.issue(f"ds_read2st64_b32 v[{r}:{r+1}], v{ad} offset0:{o} offset1:{o+34}", v)
            ds.issue(f"ds_read2st64_b32 v[{r+2}:{r+3}], v{ad} offset0:{o+68} offset1:{o+102}", v)
        for v in vals:
            ds.need(v); r = reg[v]
            a(f"v_pk_add_f32 v[{r}:{r+1}], v[{r}:{r+1}], v[{r+2}:{r+3}]")
            a(f"v_add_f32 v{r}, v{r}, v{r+1}")
        if mid: mid(reg)
        seqv = [prev] + kk
        for d in range(4): a(f"v_cvt_pk_bf16_f32 v{68+d}, v{reg[seqv[2*d+1]]}, v{reg[seqv[2*d+2]]}")
        a("ds_write_b128 v29, v[68:71]")
        for d in (1, 2, 3, 0): a(f"v_cvt_pk_bf16_f32 v{72+d}, v{reg[seqv[2*d]]}, v{reg[seqv[2*d+1]]}")
    a("s_cbranch_scc1 L_k_e23\ns_cmp_eq_u32 s45, 1\ns_cbranch_scc1 L_k_e1")
    def mid0(reg):
        reg["p"] = 64
        a(f"v_mov_b32_dpp v64, v{reg[7]} wave_shr:1 row_mask:0xf bank_mask:0xf bound_ctrl:0")
        a("v_writelane_b32 v64, 0, 32")
    expand([7, 0, 1, 2, 3, 4, 5, 6], [0, 1, 2, 3, 4, 5, 6, 7], "p", mid0)
    a("s_branch L_k_ej\nL_k_e1:")
    expand([0, 2, 4, 6, 8, "p"], [0, 0, 2, 4, 4, 4, 6, 8], "p")
    a("s_branch L_k_ej\nL_k_e23:\ns_cmp_gt_u32 s45, 3\ns_cbranch_scc1 L_k_e4")
    expand([0, 4, 8], [0, 0, 0, 4, 4, 4, 8, 8], 0)
    a("s_branch L_k_ej\nL_k_e4:")
    def mid4(reg):
        reg["m"] = 64
        a(f"v_cndmask_b32 v64, v{reg[0]}, v{reg[8]}, s[56:57]")
    expand([0, 8], [0, 0, 0, 0, "m", 8, 8, 8], 0, mid4)
    a(f"L_k_ej:\nds_write_b128 v29, v[72:75] offset:{KCS}")
    a("s_waitcnt lgkmcnt(0)\ns_barrier")
    stamp(6, True)
    AAD = [0, 3, 4, 5]
    A = lambda ri, s: 64 + 32*ri + 4*s
    ds = DS(a)
    def ldA(ri, s, half):
        o = 128*(s & 1) + 16*ri + 2*half; r = A(ri, s) + 2*half
        ds.issue(f"ds_read2_b32 v[{r}:{r+1}], v{AAD[s>>1]} offset0:{o} offset1:{o+1}", ("A", ri, s))
    haveA = set()
    if not MERGE:
        for s in range(NPRE):
            for ri in range(2):
                ldA(ri, s, 0); ldA(ri, s, 1); haveA.add((ri, s))
        a("s_barrier")
        stamp(8, True)
    NS = 7
    slot_reg = lambda i: 12 + 4*i
    accreg = {0: 40, 1: 44, 2: 48, 3: 52, 4: 56, 5: 60, 6: 40, 7: 44}
    ph_order = []
    for p, Js in enumerate(PH):
        us = list(range(Js[-1] + 1))
        if p % 2 == 1: us = us[::-1]
        ph_order.append([(ri, u) for u in us for ri in range(2)])
    if len(PH) == 3 and not (NPRE >= 5 and not MERGE):
        ph_order = [
            [(0,0),(1,0),(0,1),(1,1)],
            [(0,3),(1,3),(0,4),(1,4),(0,2),(1,2),(0,1),(1,1),(0,0),(1,0)],
            [(0,2),(1,2),(0,1),(1,1),(0,0),(1,0),(0,3),(1,3),(0,4),(1,4),(0,5),(1,5),(0,6),(1,6),(0,7),(1,7)]]
    if optval("ph", 0) == 1:
        o = lambda us: [(ri, u) for u in us for ri in range(2)]
        ph_order = [o([0, 1]), o([2, 1, 0, 3]), o([3, 2, 1, 0, 4, 5]), o([5, 4, 0, 1, 2, 3, 6, 7])]
    if optval("ph", 0) == 2:
        o = lambda us: [(ri, u) for u in us for ri in range(2)]
        ph_order = [o([0]), o([1, 0, 2]), o([2, 1, 0, 3, 4, 5]), o([5, 4, 3, 2, 1, 0, 6, 7])]
    if optval("ph", 0) == 3:
        o = lambda us: [(ri, u) for u in us for ri in range(2)]
        ph_order = [o([0]), o([1, 0, 2]), o([2, 1, 0, 3, 4]), o([4, 3, 0, 1, 2, 5, 6]), o([6, 5, 2, 1, 0, 3, 4, 7])]
    mf = []
    uses = []
    for p, lst in enumerate(ph_order):
        for b in lst:
            uses.append(b)
            for J in PH[p]:
                if J - b[1] >= 0: mf.append((p, b[0], b[1], J, len(uses) - 1))
    loads = []
    resident_plan = {}
    seenA = set(haveA)
    lastuse = -1
    for (p, ri, u, J, ui) in mf:
        if ui != lastuse: loads.append(("B", (ri, u), ui)); lastuse = ui
        if (ri, J - u) not in seenA:
            seenA.add((ri, J - u)); loads += [("A", (ri, J - u), 0), ("A", (ri, J - u), 1)]
    resident = {}; free = list(range(NS))
    def next_use(b, after):
        for i in range(after, len(uses)):
            if uses[i] == b: return i
        return 10**9
    def pump(cur, maxn):
        n = 0; i = 0
        while i < len(loads) and n < maxn:
            kind, b, x = loads[i]
            if kind == "A":
                ldA(b[0], b[1], x); loads.pop(i); n += 1; continue
            if b in resident:
                if next_use(b, cur) == x or True:
                    if x <= cur: loads.pop(i)
                    else: i += 1
                    continue
            if not free:
                nu, y = max((next_use(y, cur), y) for y in resident)
                if nu <= x or (nu < 10**9 and x - cur > 2):
                    i += 1; continue
                free.append(resident.pop(y))
            sl = free.pop(0); resident[b] = sl
            ds.issue(f"ds_read_b128 v[{slot_reg(sl)}:{slot_reg(sl)+3}], v2 offset:{512*(7-b[1])+64*b[0]}", ("B", b))
            loads.pop(i); n += 1
    pump(0, 12 if MERGE else 7)
    started = set(); pending = []
    def phase_end(p):
        def w():
            for J in PH[p]:
                t = 8 + 2*(J & 1)
                a(f"v_cvt_pk_bf16_f32 v{t}, v{accreg[J]}, v{accreg[J]+1}\nv_cvt_pk_bf16_f32 v{t+1}, v{accreg[J]+2}, v{accreg[J]+3}")
                ds.issue(f"ds_write_b64 v6, v[{t}:{t+1}] offset:{J*8*576}", ("Y", p))
        def bar():
            ds.need(("Y", p)); a("s_barrier")
        return w, bar
    for n, (p, ri, u, J, ui) in enumerate(mf):
        b = (ri, u); s = J - u
        while b not in resident or any(k == "A" and bb == (ri, s) for k, bb, _ in loads): pump(ui, 1)
        ds.need(("B", b)); ds.need(("A", ri, s))
        sl = resident[b]
        c = f"v[{accreg[J]}:{accreg[J]+3}]" if J in started else "0"
        started.add(J)
        a(f"v_mfma_f32_16x16x32_bf16 v[{accreg[J]}:{accreg[J]+3}], v[{A(ri,s)}:{A(ri,s)+3}], v[{slot_reg(sl)}:{slot_reg(sl)+3}], {c}")
        last_of_use = n + 1 == len(mf) or mf[n+1][4] != ui
        for pe in pending: pe[0] -= 1
        hold = bool(pending) or (n + 1 < len(mf) and p == 0)
        while pending and pending[0][0] <= 0: pending.pop(0)[1]()
        if not hold: pump(ui + 1 if last_of_use else ui, optval("pump", 2))
        if n + 1 == len(mf) or mf[n+1][0] != p:
            w, bar = phase_end(p)
            if n + 1 == len(mf): w(); bar()
            else: pending += [[optval("wd", 2), w], [optval("bd", 4), bar]]
    assert len(mf) == 72 and not pending
    finish("L_k_probe", 10)
    role[0] = "f"
    F_XS, F_PART, F_MISC = 0, 1024, 5120
    G, GT, D, DT = 32, 64, 96, 32
    a(f"""
    L_ffn:
    s_cmp_ge_u32 s2, {0 if "konly" in opt else 252}
    s_cbranch_scc1 L_exit
    s_min_u32 s41, s43, 4
    s_mul_i32 s45, s43, 3
    s_add_u32 s41, s41, s45
    s_add_u32 s41, s41, s44
    s_sub_u32 s41, s41, 28
    v_and_b32 v3, 15, v1
    v_lshrrev_b32 v4, 4, v1
    v_lshrrev_b32 v5, 3, v3
    v_lshl_add_u32 v5, v5, 2, v4
    v_mul_u32_u24 v5, 28672, v5
    v_and_b32 v6, 7, v3
    v_lshl_add_u32 v5, v6, 4, v5
    s_sub_u32 s53, s40, 1
    s_lshr_b32 s56, s53, 1
    s_mul_i32 s44, s56, 229376
    s_lshl_b32 s45, s41, 7
    s_add_u32 s44, s44, s45
    s_add_u32 s45, s44, 7168
    s_add_u32 s46, s44, 14336
    s_add_u32 s47, s44, 21504
    s_and_b32 s57, s53, 1
    s_waitcnt lgkmcnt(0)
    """)
    stamp(1)
    a("""
    s_load_dword s42, s[34:35], 0
    s_cselect_b64 s[8:9], s[24:25], s[22:23]
    s_mov_b32 s10, 1605632
    s_mov_b32 s11, 0x20000
    s_cmp_ge_u32 s53, 14
    s_cbranch_scc1 L_f_nogu
    """)
    for r in range(8):
        a(f"buffer_load_dwordx4 v[{G+4*r}:{G+4*r+3}], v5, s[8:11], s{44+(r>>1)} offen offset:{3584*(r&1)}")
    a("L_f_nogu:")
    srd(12, 26, 1605632); srd(36, 34, WS_SIZE)
    a(f"""
    s_and_b32 s50, s40, 3
    s_bfe_u32 s51, s40, 0x10002
    s_lshl_b32 s48, s50, 4
    v_add_u32 v7, s48, v3
    v_mul_u32_u24 v8, 7168, v4
    v_cmp_gt_u32 vcc, 56, v7
    v_lshl_add_u32 v8, v7, 4, v8
    v_bfrev_b32 v9, -2
    v_lshl_add_u32 v10, v7, 2, v4
    v_lshlrev_b32 v10, 4, v10
    v_cndmask_b32 v8, v9, v8, vcc
    v_cndmask_b32 v10, v9, v10, vcc
    s_lshl_b32 s52, s41, 1
    s_add_u32 s52, s52, s51
    s_mul_i32 s48, s52, 28672
    s_add_u32 s49, s48, 3584
    s_mul_i32 s52, s52, {FFS}
    s_add_u32 s52, s52, {WS_FFN}
    """)
    def dloads(rs=range(8)):
        for r in rs:
            a(f"buffer_load_dwordx4 v[{D+4*r}:{D+4*r+3}], v8, s[12:15], s{48+(r>>2)} offen offset:{896*(r&3)}")
    a(f"""
    s_mov_b32 s54, 0x05040100
    s_mov_b32 s55, 0x07060302
    v_and_b32 v14, 1, v3
    v_lshlrev_b32 v14, 6, v14
    v_lshl_add_u32 v14, v4, 4, v14
    s_lshl_b32 s44, s56, 7
    v_add_u32 v14, s44, v14
    v_lshl_add_u32 v15, v6, 2, v4
    v_lshlrev_b32 v15, 4, v15
    s_lshl_b32 s44, s56, 9
    s_lshl_b32 s45, s57, 2
    s_add_u32 s44, s44, s45
    s_add_u32 s44, s44, {F_PART}
    v_add_u32 v15, s44, v15
    v_lshl_add_u32 v16, v4, 3, v6
    v_lshlrev_b32 v16, 3, v16
    s_lshl_b32 s44, s51, 8
    v_add_u32 v16, s44, v16
    v_mov_b32 v17, {F_MISC}
    s_waitcnt lgkmcnt(0)
    """)
    next_tag()
    def transp(src, dst):
        for rp in range(4):
            for d in range(4):
                x, y = src + 8*rp + d, src + 8*rp + 4 + d
                a(f"v_perm_b32 v{dst+8*d+rp}, v{y}, v{x}, s54\nv_perm_b32 v{dst+8*d+4+rp}, v{y}, v{x}, s55")
    a("""
    s_cmp_eq_u32 s40, 0
    s_cbranch_scc1 L_f_router
    s_waitcnt vmcnt(0)
    """)
    stamp(2)
    a("""
    s_barrier
    s_cmp_lt_u32 s40, 8
    s_cbranch_scc1 L_f_nod
    """)
    ND1 = optval("nd1", 4)
    dloads(range(ND1))
    a("L_f_nod:")
    transp(G, GT)
    a("s_barrier\ns_cmp_lt_u32 s40, 8\ns_cbranch_scc1 L_f_join")
    dloads(range(ND1, 8))
    a("s_branch L_f_join")
    a(f"""
    L_f_router:
    s_setprio 3
    v_lshlrev_b32 v18, 4, v1
    s_mov_b32 s44, {WS_KEY}
    s_mov_b32 s45, {WS_KEY+4096}
    s_mov_b32 s46, 0
    s_barrier
    """)
    stamp(2)
    a("L_f_kpoll:")
    for i in range(8):
        a(f"buffer_load_dwordx4 v[{32+4*i}:{35+4*i}], v18, s[36:39], s{44+(i>>2)} offen offset:{1024*(i&3)} sc1")
    a("v_mov_b32 v19, 0\nv_mov_b32 v20, 0")
    for i in range(8):
        a(f"s_waitcnt vmcnt({7-i})")
        a(f"v_bitop3_b32 v19, v{33+4*i}, s42, v19 bitop3:0xbe")
        a(f"v_max3_u32 v20, v{32+4*i}, v{34+4*i}, v20")
        a(f"v_bitop3_b32 v19, v{35+4*i}, s42, v19 bitop3:0xbe")
    a(f"""
    v_cmp_ne_u32 vcc, 0, v19
    s_cbranch_vccz L_f_kpolled
    s_add_u32 s46, s46, 1
    s_cmp_ge_u32 s46, {SPIN_MAX}
    s_cbranch_scc1 L_f_kpolled
    s_mov_b64 exec, vcc
    s_branch L_f_kpoll
    L_f_kpolled:
    s_mov_b64 exec, -1
    """)
    stamp(3)
    for sh in (1, 2, 4, 8):
        a(f"v_max_u32_dpp v20, v20, v20 row_shr:{sh} row_mask:0xf bank_mask:0xf")
    a("v_max_u32_dpp v20, v20, v20 row_bcast:15 row_mask:0xa bank_mask:0xf")
    a("v_max_u32_dpp v20, v20, v20 row_bcast:31 row_mask:0xc bank_mask:0xf")
    a(f"""
    v_readlane_b32 s44, v20, 63
    s_mov_b32 exec_hi, 0xffffff
    s_and_b32 s45, s44, 0x7ff
    s_sub_u32 s45, 2047, s45
    s_mul_i32 s46, s45, 896
    buffer_load_dwordx4 v[32:35], v18, s[4:7], s46 offen
    s_lshr_b32 s47, s45, 2
    s_lshl_b32 s47, s47, 4
    s_bfe_u32 s56, s45, 0x10001
    s_lshl_b32 s56, s56, 13
    s_add_u32 s47, s47, s56
    s_add_u32 s47, s47, {WS_STAT}
    s_mov_b32 s46, 0
    buffer_load_dwordx4 v[36:39], off, s[36:39], s47 sc1
    s_barrier
    s_ashr_i32 s56, s44, 31
    s_not_b32 s56, s56
    s_or_b32 s56, s56, 0x80000000
    s_xor_b32 s56, s56, s44
    s_and_b32 s56, s56, 0xffff0000
    v_mov_b32 v21, 0xbfb8aa3b
    v_mul_f32 v21, s56, v21
    v_exp_f32 v21, v21
    v_mov_b32 v20, s45
    v_add_f32 v21, 1.0, v21
    v_rcp_f32 v21, v21
    ds_write_b64 v17, v[20:21]
    L_f_spoll:
    s_waitcnt vmcnt(0)
    v_cmp_ne_u32 vcc, s42, v39
    s_cbranch_vccz L_f_spolled
    s_add_u32 s46, s46, 1
    s_cmp_ge_u32 s46, {SPIN_MAX}
    s_cbranch_scc1 L_f_spolled
    buffer_load_dwordx4 v[36:39], off, s[36:39], s47 sc1
    s_branch L_f_spoll
    L_f_spolled:
    """)
    stamp(4)
    a(f"""
    s_bitcmp1_b32 s45, 0
    s_cselect_b64 vcc, -1, 0
    v_lshlrev_b32 v40, 16, v38
    v_and_b32 v41, 0xffff0000, v38
    v_cndmask_b32 v36, v36, v37, vcc
    v_cndmask_b32 v37, v40, v41, vcc
    """)
    for d in range(4):
        a(f"v_lshlrev_b32 v{40+2*d}, 16, v{32+d}\nv_and_b32 v{41+2*d}, 0xffff0000, v{32+d}")
    for d in range(4):
        a(f"v_pk_add_f32 v[{40+2*d}:{41+2*d}], v[{40+2*d}:{41+2*d}], v[36:37] op_sel:[0,1] op_sel_hi:[1,1] neg_lo:[0,1] neg_hi:[0,1]")
    for d in range(4):
        a(f"v_pk_mul_f32 v[{40+2*d}:{41+2*d}], v[{40+2*d}:{41+2*d}], v[36:37] op_sel:[0,0] op_sel_hi:[1,0]")
    for d in range(4):
        a(f"v_cvt_pk_bf16_f32 v{32+d}, v{40+2*d}, v{41+2*d}")
    a(f"""
    ds_write_b128 v18, v[32:35] offset:{F_XS}
    s_mov_b64 exec, -1
    s_waitcnt lgkmcnt(0)
    L_f_join:
    s_barrier
    """)
    stamp(5, True)
    a(f"""
    s_cmp_ge_u32 s53, 14
    s_cbranch_scc1 L_f_nogu2
    ds_read_b128 v[20:23], v14 offset:{F_XS}
    s_waitcnt lgkmcnt(0)
    """)
    R = lambda c: 32 + 4*c
    for c in range(8):
        a(f"v_mfma_f32_16x16x32_bf16 v[{R(c)}:{R(c)+3}], v[20:23], v[{GT+4*c}:{GT+4*c+3}], 0")
    for c in range(8):
        a(f"v_add_f32_dpp v{4+(c&1)}, v{R(c)+1}, v{R(c)} row_ror:8 row_mask:{hex(1<<(c>>1))} bank_mask:0xf")
    a(f"""
    s_mov_b32 exec_lo, 0x00ff00ff
    s_mov_b32 exec_hi, 0x00ff00ff
    ds_write2_b32 v15, v4, v5 offset0:0 offset1:2
    s_mov_b64 exec, -1
    s_waitcnt lgkmcnt(0)
    L_f_nogu2:
    s_barrier
    s_cmp_lt_u32 s40, 8
    s_cbranch_scc1 L_f_end
    """)
    stamp(6, True)
    DT = 64
    perms = []
    for d in range(4):
        for rp in range(4):
            x, y = D + 8*rp + d, D + 8*rp + 4 + d
            perms += [f"v_perm_b32 v{DT+8*d+rp}, v{y}, v{x}, s54", f"v_perm_b32 v{DT+8*d+4+rp}, v{y}, v{x}, s55"]
    def pm(n):
        for _ in range(n):
            if perms: a(perms.pop(0))
    for w in range(7):
        a(f"ds_read_b64 v[{32+2*w}:{33+2*w}], v16 offset:{F_PART+512*w}")
    a("ds_read_b64 v[30:31], v17\nv_mov_b32 v7, s42\ns_waitcnt vmcnt(0)")
    stamp(3)
    pm(8)
    a("""
    s_waitcnt lgkmcnt(0)
    v_pk_add_f32 v[32:33], v[32:33], v[34:35]
    v_pk_add_f32 v[36:37], v[36:37], v[38:39]
    v_pk_add_f32 v[40:41], v[40:41], v[42:43]
    v_pk_add_f32 v[32:33], v[32:33], v[44:45]
    v_pk_add_f32 v[36:37], v[36:37], v[40:41]
    v_pk_add_f32 v[32:33], v[32:33], v[36:37]
    v_mul_f32 v34, 0xbfb8aa3b, v32
    v_exp_f32 v34, v34
    v_mul_f32 v32, v32, v33
    v_add_f32 v34, 1.0, v34
    v_rcp_f32 v34, v34
    v_mov_b32 v6, v30
    v_mul_f32 v32, v32, v34
    """)
    pm(2)
    a("v_mov_b32_dpp v33, v32 quad_perm:[1,1,3,3] row_mask:0xf bank_mask:0xf\nv_cvt_pk_bf16_f32 v32, v32, v33")
    pm(2)
    for q in range(4):
        a(f"v_mov_b32_dpp v{20+q}, v32 row_newbcast:{2*q} row_mask:0xf bank_mask:0xf")
    pm(4)
    for c in range(8):
        a(f"v_mfma_f32_16x16x32_bf16 v[{R(c)}:{R(c)+3}], v[20:23], v[{DT+4*c}:{DT+4*c+3}], 0")
        pm(4)
    for c in range(8):
        a(f"v_mul_f32_dpp v{4+(c&1)}, v{R(c)}, v31 quad_perm:[0,1,2,3] row_mask:{hex(1<<(c>>1))} bank_mask:0xf")
    a("buffer_store_dwordx4 v[4:7], v10, s[36:39], s52 offen sc1")
    stamp(7)
    a("L_f_end:")
    finish("L_f_probe", 9)
    a("L_exit:\ns_endpgm")
    a.pad(verbose=bool(os.environ.get("PADV")))
    hdr = open(os.path.join(os.path.dirname(__file__), "header.txt")).read()
    src = hdr + f"""; @launch grid=({256 if "map7" in opt else 252},1,1) block=(1024,1,1) lds={LDS_BYTES}
.amdgcn_target "amdgcn-amd-amdhsa--gfx950"
.text
.globl {KN}
.p2align 8
.type {KN},@function
""" + a.text() + f""".section .rodata,"a"
.p2align 6
.amdhsa_kernel {KN}
  .amdhsa_next_free_vgpr 128
  .amdhsa_next_free_sgpr {100 if (stamps or probe) else 64}
  .amdhsa_accum_offset 128
  .amdhsa_group_segment_fixed_size 0
  .amdhsa_kernarg_size 120
  .amdhsa_user_sgpr_count 2
  .amdhsa_user_sgpr_kernarg_segment_ptr 1
  .amdhsa_system_sgpr_workgroup_id_x 1
.end_amdhsa_kernel
"""
    return src

if __name__ == "__main__":
    out = sys.argv[1]
    opts = sys.argv[2:]
    probe = None
    for o in opts:
        if o.startswith("probe="):
            r, k, lo, hi = o[6:].split(",")
            probe = (r, int(k), (int(lo), int(hi)))
    open(out, "w").write(gen(stamps="stamps" in opts, probe=probe, opt=opts))
```
